```python
import torch

def _softmax(x, axis=-1):
    return torch.softmax(x, dim=axis)
def _gelu(x):
    return torch.nn.functional.gelu(x, approximate="tanh")
def _silu(x):
    return torch.nn.functional.silu(x)
def _sigmoid(x):
    return torch.sigmoid(x)
def _layernorm(x, axis=-1, eps=1e-5):
    m = x.mean(dim=axis, keepdim=True)
    v = x.var(dim=axis, keepdim=True, unbiased=False)
    return (x - m) / torch.sqrt(v + eps)
def _scatter_add(tgt, idx, src, axis=0):
    return tgt.clone().index_add_(axis, idx, src)
def _segment_sum(src, seg, n):
    out = torch.zeros((n,) + src.shape[1:], dtype=src.dtype)
    return out.index_add_(0, seg, src)
def _pad(x, pw):
    flat = tuple(v for pair in reversed(pw) for v in pair)
    return torch.nn.functional.pad(x, flat)

kernel_name = 'standalone__mha_softmax__sampling'

def setup_inputs():

    _w = (lambda a: (lambda t: t.to(torch.bfloat16) if t.is_floating_point() else t)(torch.as_tensor(a)))
    B, H, Sq, Sk, D = 8, 32, 8, 4096, 128
    return {
        "q": _w((lambda *s: torch.randn(*s, dtype=torch.bfloat16) * 0.8)(B, H, Sq, D)),
        "k": _w((lambda *s: torch.randn(*s, dtype=torch.bfloat16) * 0.8)(B, H, Sk, D)),
        "v": _w((lambda *s: torch.randn(*s, dtype=torch.bfloat16) * 0.05)(B, H, Sk, D)),
    }

def reference(q, k, v):
    scale = q.shape[-1] ** -0.5
    scores = torch.einsum("bhqd,bhkd->bhqk", q, k) * scale
    p = _softmax(scores, axis=-1)
    return torch.einsum("bhqk,bhkd->bhqd", p, v)
```

```python
import re

TRANS = ("v_exp_f32", "v_rcp_f32", "v_log_f32", "v_rsq_f32", "v_sqrt_f32")

def regs_of(tok):
    tok = tok.strip().lstrip("-").strip("|")
    m = re.fullmatch(r"([vsa])(\d+)", tok)
    if m:
        return [m.group(1) + m.group(2)]
    m = re.fullmatch(r"([vsa])\[(\d+):(\d+)\]", tok)
    if m:
        return [m.group(1) + str(i) for i in range(int(m.group(2)), int(m.group(3)) + 1)]
    if tok in ("vcc", "vcc_lo", "vcc_hi"):
        return ["vcc"]
    if tok in ("exec", "exec_lo", "exec_hi"):
        return ["exec"]
    if tok == "m0":
        return ["m0"]
    return []

def parse(ins):
    ins = ins.split(";")[0].strip()
    parts = ins.split(None, 1)
    op = parts[0]
    ops = []
    mods = ""
    if len(parts) > 1:
        toks = [t.strip() for t in parts[1].split(",")]
        for i, t in enumerate(toks):
            if i == len(toks) - 1 or " " in t:
                sp = t.split(None, 1)
                ops.append(sp[0])
                if len(sp) > 1:
                    mods += " " + ",".join([sp[1]] + toks[i + 1:])
                    break
            else:
                ops.append(t)
    return op, ops, mods

class Info:
    pass

def classify(ins):
    op, ops, mods = parse(ins)
    I = Info()
    I.op = op
    I.kind = "other"
    I.rd, I.wr = [], []
    I.ab, I.c = [], []
    I.dpp = False
    I.lds = False
    I.data = []
    R = [regs_of(o) for o in ops]
    if op.startswith("v_mfma"):
        I.kind = "mfma"
        I.wr = R[0]; I.ab = R[1] + R[2]; I.c = R[3]; I.rd = I.ab + I.c
    elif op.startswith("v_permlane"):
        I.kind = "valu"; I.perm = True
        I.wr = R[0] + R[1]; I.rd = R[0] + R[1]
    elif op.startswith("v_"):
        I.kind = "valu"
        I.wr = R[0]
        I.rd = sum(R[1:], [])
        if "_dpp" in op or "row_" in mods or "quad_perm" in mods:
            I.dpp = True
            I.rd = I.rd + R[0]
        if op.startswith(("v_fmac", "v_mac", "v_writelane", "v_pk_fmac")):
            I.rd = I.rd + R[0]
        if op.startswith("v_cndmask") and len(ops) == 3:
            I.rd = I.rd + ["vcc"]
    elif op.startswith("buffer_load") or op.startswith("global_load"):
        I.kind = "vmem"
        if " lds" in mods or "_lds_" in op:
            I.lds = True
            I.rd = sum(R, []) + ["m0"]
        else:
            I.wr = R[0]; I.rd = sum(R[1:], [])
    elif op.startswith("buffer_store"):
        I.kind = "vmem"; I.rd = sum(R, [])
        if "x3" in op or "x4" in op: I.data = R[0]
    elif op.startswith("global_store"):
        I.kind = "vmem"; I.rd = sum(R, [])
        if "x3" in op or "x4" in op: I.data = R[1]
    elif op.startswith("ds_read"):
        I.kind = "ds"; I.wr = R[0]; I.rd = sum(R[1:], [])
    elif op.startswith("ds_"):
        I.kind = "ds"; I.rd = sum(R, [])
    elif op.startswith("s_"):
        I.kind = "salu"
        if op not in ("s_waitcnt", "s_nop", "s_barrier", "s_endpgm") and not op.startswith(("s_cmp", "s_cbranch", "s_branch")):
            I.wr = R[0] if R else []
            I.rd = sum(R[1:], [])
        else:
            I.rd = sum(R, [])
    return I

class Haz:
    def __init__(self):
        self.t = 0
        self.valu_w = {}
        self.trans_w = {}
        self.mfma_w = {}
        self.mfma_c = {}
        self.store_d = {}
        self.salu_w = {}
    def need(self, I):
        n = 0
        def req(tab, r, ws):
            nonlocal n
            if r in tab:
                t0 = tab[r][0] if isinstance(tab[r], tuple) else tab[r]
                have = self.t - t0 - 1
                n = max(n, ws - have)
        if I.kind == "mfma":
            for r in I.rd:
                req(self.valu_w, r, 2)
            req(self.valu_w, "exec", 4)
            for r in I.ab:
                req(self.mfma_w, r, 8)
            for r in I.c:
                if r in self.mfma_w and self.mfma_w[r][1] != tuple(I.c):
                    req(self.mfma_w, r, 6)
            if not I.c or tuple(I.c) != tuple(I.wr):
                for r in I.wr:
                    req(self.mfma_w, r, 8)
        elif I.kind == "valu":
            for r in I.rd + I.wr:
                req(self.mfma_w, r, 8)
            for r in I.wr:
                req(self.mfma_c, r, 3)
                req(self.store_d, r, 2)
            if I.dpp or I.op.startswith("v_permlane"):
                for r in I.rd:
                    req(self.valu_w, r, 2)
            if I.dpp:
                req(self.valu_w, "exec", 5)
            if I.op.startswith(("v_readfirstlane", "v_readlane")):
                for r in I.rd:
                    req(self.valu_w, r, 1)
            if not I.op.startswith(TRANS):
                for r in I.rd:
                    req(self.trans_w, r, 1)
            for r in I.rd:
                if r[0] == "s" or r == "vcc":
                    req(self.valu_w, r, 4 if I.op.startswith(("v_readlane", "v_writelane")) else 2)
        elif I.kind in ("vmem", "ds"):
            for r in I.rd + I.wr:
                req(self.mfma_w, r, 8)
            for r in I.rd:
                if r[0] == "s":
                    req(self.valu_w, r, 5)
            for r in I.wr:
                req(self.store_d, r, 1)
            if I.lds:
                req(self.salu_w, "m0", 1)
        elif I.kind == "salu":
            for r in I.rd:
                req(self.valu_w, r, 2)
        return n
    def emit(self, ins, out):
        s = ins.strip()
        if not s or s.startswith(";") or s.endswith(":"):
            out.append(ins)
            return
        I = classify(s)
        n = self.need(I)
        while n > 0:
            k = min(n, 16)
            out.append(f"    s_nop {k-1}")
            self.t += k
            n -= k
        out.append("    " + s)
        if I.op == "s_nop":
            self.t += int(s.split()[1])
        if I.kind == "valu":
            for r in I.wr:
                self.valu_w[r] = self.t
                self.trans_w.pop(r, None)
                self.mfma_w.pop(r, None)
                if I.op.startswith(TRANS):
                    self.trans_w[r] = self.t
        elif I.kind == "mfma":
            for r in I.wr:
                self.mfma_w[r] = (self.t, tuple(I.wr))
                self.valu_w.pop(r, None)
            for r in I.c:
                self.mfma_c[r] = self.t
        elif I.kind == "salu":
            for r in I.wr:
                self.salu_w[r] = self.t
                self.valu_w.pop(r, None)
        if I.data:
            for r in I.data:
                self.store_d[r] = self.t
        self.t += 1

def roll(blocks, period, scnt, label):
    out = []
    p = 0
    nl = 0
    n = len(blocks)
    info = []
    while p < n:
        c = 1
        while p + (c + 1) * period <= n and blocks[p + c * period: p + (c + 1) * period] == blocks[p: p + period]:
            c += 1
        if c >= 2:
            out.append(f"    s_mov_b32 s{scnt}, {c}")
            out.append(f"{label}{nl}:")
            for b in blocks[p:p + period]:
                out += b
            out.append(f"    s_sub_u32 s{scnt}, s{scnt}, 1")
            out.append(f"    s_cmp_lg_u32 s{scnt}, 0")
            out.append(f"    s_cbranch_scc1 {label}{nl}")
            info.append((p, c))
            nl += 1
            p += c * period
        else:
            out += blocks[p]
            p += 1
    return out, info
```

```python
import sys, argparse, struct, math
from asmlib import Haz, roll

HEADER = """; Kernarg layout for this problem (48 bytes, ptrs only, base s[0:1]):
"""
NAME = "standalone__mha_softmax__sampling_kernel"

def r4(x): return f"v[{x}:{x+3}]"

class Item:
    def __init__(self, key, prio, ins, loads=(), after=(), reads=()):
        self.key, self.prio, self.ins = key, prio, ins
        self.loads, self.after, self.reads = list(loads), list(after), list(reads)

def gen(NW=4, D=5, mode="online", NBK=1, NBV=1, budget=10, stamp=False, dtail=0, ntail=0, dhead=0, nhead=0,
        flags="nt", ldsmin=0, qpos=2, verbose=False):
    phase = mode == "phase"
    ntiles = 128 // NW
    out = []
    H = Haz()
    cur = out
    def e(s):
        H.emit(s, cur)
    if phase:
        wstride = ntiles * 1024
        mlbase = NW * wstride
    else:
        wstride = 4224
        mlbase = NW * wstride
    lds_bytes = max(mlbase + NW * 64, ldsmin)
    out.append(HEADER.rstrip())
    out.append(f"; @launch grid=(256,1,1) block=({NW*64},1,1) lds={lds_bytes}")
    out.append('.amdgcn_target "amdgcn-amd-amdhsa--gfx950"')
    out.append(".text")
    out.append(f".globl {NAME}")
    out.append(".p2align 8")
    out.append(f".type {NAME},@function")
    out.append(f"{NAME}:")
    sK, sV, sQ, sO = 12, 16, 20, 24
    sW, sT, sCnt, sC, sPlo, sPhi = 28, 29, 30, 31, 32, 33
    sA, sB, sA0 = 34, 35, 36
    vLane, vOffK, vOffV, vOffQ = 1, 2, 3, 4
    vM, vMc, vL, vX, vY, vAl, vZ = 5, 6, 7, 8, 9, 10, 11
    vM0, vM1, vLw, vLr = 12, 13, 14, 15
    vT = 16
    vB = 24
    vPa = 28
    vEa, vEm = 30, 31
    vQ = 32
    vS = 40
    vO = 56
    vA = 88
    vKb = 120
    vVb = vKb + NBK * 32
    nv = vVb + NBV * 32
    if phase:
        assert NBK == NBV
        vVb = vKb
        nv = vKb + NBK * 32
    assert nv <= 512

    e("s_cmp_ge_u32 s2, 256")
    e("s_cbranch_scc1 L_end")
    if stamp:
        e("s_memrealtime s[40:41]")
    e("s_load_dwordx4 s[4:7], s[0:1], 0")
    e("s_load_dwordx4 s[8:11], s[0:1], 16")
    e(f"v_readfirstlane_b32 s{sW}, v0")
    e(f"v_and_b32 v{vLane}, 63, v0")
    e(f"v_bfe_u32 v{vX}, v{vLane}, 2, 2")
    e(f"v_lshlrev_b32 v{vX}, 8, v{vX}")
    e(f"v_bfe_u32 v{vY}, v{vLane}, 1, 1")
    e(f"v_lshl_add_u32 v{vX}, v{vY}, 10, v{vX}")
    e(f"v_and_b32 v{vY}, 1, v{vLane}")
    e(f"v_lshl_add_u32 v{vX}, v{vY}, 6, v{vX}")
    e(f"v_lshrrev_b32 v{vZ}, 4, v{vLane}")
    e(f"v_lshl_add_u32 v{vOffK}, v{vZ}, 4, v{vX}")
    e(f"v_lshlrev_b32 v{vOffV}, 4, v{vLane}")
    e(f"v_and_b32 v{vX}, 7, v{vLane}")
    e(f"v_lshlrev_b32 v{vX}, 8, v{vX}")
    e(f"v_bfe_u32 v{vY}, v{vLane}, 3, 1")
    e(f"v_lshl_add_u32 v{vX}, v{vY}, 6, v{vX}")
    e(f"v_lshl_add_u32 v{vOffQ}, v{vZ}, 4, v{vX}")
    e(f"s_lshr_b32 s{sW}, s{sW}, 6")
    e(f"s_lshl_b32 s{sT}, s2, 20")
    e(f"s_mov_b32 s{sK+2}, 0x100000")
    e(f"s_mov_b32 s{sK+3}, 0x20000")
    e(f"s_mov_b32 s{sV+2}, 0x100000")
    e(f"s_mov_b32 s{sV+3}, 0x20000")
    e(f"s_mov_b32 s{sQ+2}, 2048")
    e(f"s_mov_b32 s{sQ+3}, 0x20000")
    e(f"s_mov_b32 s{sO+2}, 2048")
    e(f"s_mov_b32 s{sO+3}, 0x20000")
    e(f"s_lshl_b32 s{sA}, s{sW}, 13")
    e(f"s_add_u32 s{sB}, s{sA}, 4096")
    e(f"s_mov_b32 s{sA0}, s{sA}")
    e(f"s_lshl_b32 s3, s2, 11")
    e("s_waitcnt lgkmcnt(0)")
    e(f"s_add_u32 s{sK}, s6, s{sT}")
    e(f"s_addc_u32 s{sK+1}, s7, 0")
    step = NW * 8192

    VORD = [0, 2, 1, 3, 4, 6, 5, 7]
    loads = []
    if phase:
        for t in range(ntiles):
            loads += [("K", t, x) for x in range(8)]
        for t in range(ntiles):
            loads += [("V", t, x) for x in range(8)]
    else:
        for t in range(ntiles):
            loads += [("K", t, x) for x in range(8)] + [("V", t, x) for x in range(8)]
    idx = {l: n for n, l in enumerate(loads)}
    NL = len(loads)
    def kreg(t, x): return vKb + (t % NBK) * 32 + x * 4
    def vreg(t, row):
        if phase:
            return vVb + ((t + ntiles) % NBV) * 32 + VORD.index(row) * 4
        return vVb + (t % NBV) * 32 + VORD.index(row) * 4
    def dest(l):
        k, t, x = l
        return kreg(t, x) if k == "K" else vreg(t, VORD[x])
    def load_text(l):
        k, t, x = l
        if k == "K":
            u, hf = x >> 1, x & 1
            off = (u & 1) * 2048 + hf * 128
            so = sA if u < 2 else sB
            return f"buffer_load_dwordx4 {r4(dest(l))}, v{vOffK}, s[{sK}:{sK+3}], s{so} offen" + (f" offset:{off}" if off else "") + f" {flags}"
        row = VORD[x]
        off = (row & 3) * 1024
        so = sA if row < 4 else sB
        return f"buffer_load_dwordx4 {r4(dest(l))}, v{vOffV}, s[{sV}:{sV+3}], s{so} offen" + (f" offset:{off}" if off else "") + f" {flags}"

    items = []
    def add(*a, **k):
        items.append(Item(*a, **k))
    def qk_items(t, tset, free_after):
        for u in range(4):
            add(("QK", t, u), (t, 0, u), [
                f"v_mfma_f32_16x16x32_bf16 {r4(vS+4*u)}, {r4(kreg(t,2*u))}, {r4(vQ)}, 0",
                f"v_mfma_f32_16x16x32_bf16 {r4(vS+4*u)}, {r4(kreg(t,2*u+1))}, {r4(vQ+4)}, {r4(vS+4*u)}"],
                loads=[("K", t, 2*u), ("K", t, 2*u+1), "Q"], after=[("DP", t-1, u >> 1)],
                reads=[("K", t, 2*u), ("K", t, 2*u+1)])
        for p in range(2):
            ins = []
            for u in (2*p, 2*p+1):
                ins.append(f"v_add_f32_dpp v{tset+u}, v{vS+4*u+1}, v{vS+4*u} row_ror:8 row_mask:0xf bank_mask:0x3")
            for u in (2*p, 2*p+1):
                ins.append(f"v_add_f32_dpp v{tset+u}, v{vS+4*u+2}, v{vS+4*u+3} row_ror:8 row_mask:0xf bank_mask:0xc")
            add(("DP", t, p), (t, 1, p), ins, after=[("QK", t, 2*p), ("QK", t, 2*p+1)] + free_after)
    def red_max():
        return [f"v_mov_b32 v{vY}, v{vX}",
                f"v_permlane16_swap_b32 v{vX}, v{vY}",
                f"v_max_f32 v{vX}, v{vX}, v{vY}",
                f"v_mov_b32 v{vY}, v{vX}",
                f"v_permlane32_swap_b32 v{vX}, v{vY}",
                f"v_max_f32 v{vX}, v{vX}, v{vY}",
                f"v_max_f32_dpp v{vM}, v{vX}, v{vX} row_ror:8 row_mask:0xf bank_mask:0xf"]
    def exp_ins(ts):
        return [f"v_fma_f32 v{ts+u}, v{ts+u}, s{sC}, -v{vMc}" for u in range(4)] + \
               [f"v_exp_f32 v{ts+u}, v{ts+u}" for u in range(4)]
    def cvt_ins(ts):
        return [f"v_cvt_pk_bf16_f32 v{vPa}, v{ts}, v{ts+1}",
                f"v_cvt_pk_bf16_f32 v{vPa+1}, v{ts+2}, v{ts+3}",
                f"v_add_f32 v{vX}, v{ts}, v{ts+1}",
                f"v_add_f32 v{vY}, v{ts+2}, v{ts+3}",
                f"v_and_b32 v{vB}, v{vPa}, v{vM0}",
                f"v_and_b32 v{vB+1}, v{vPa+1}, v{vM0}",
                f"v_and_b32 v{vB+2}, v{vPa}, v{vM1}",
                f"v_and_b32 v{vB+3}, v{vPa+1}, v{vM1}",
                f"v_add_f32 v{vX}, v{vX}, v{vY}"]
    def pv_items(t, tp, extra):
        pairs = [(0, 2, 0), (1, 3, 2), (4, 6, 1), (5, 7, 3)]
        for p, (a, b, slot) in enumerate(pairs):
            ins = []
            for j in range(8):
                sel = sPhi if j & 1 else sPlo
                ins.append(f"v_perm_b32 v{vA+4*j+slot}, v{vreg(t,b)+(j>>1)}, v{vreg(t,a)+(j>>1)}, s{sel}")
            add(("PM", t, p), (tp, 5, p), ins, loads=[("V", t, 2*p), ("V", t, 2*p+1)], after=[("PV", t-1, 1)],
                reads=[("V", t, 2*p), ("V", t, 2*p+1)])
        for hfl in range(2):
            ins = [f"v_mfma_f32_16x16x32_bf16 {r4(vO+4*j)}, {r4(vA+4*j)}, {r4(vB)}, {r4(vO+4*j)}" for j in range(4*hfl, 4*hfl+4)]
            add(("PV", t, hfl), (tp, 6, hfl), ins, after=[("PM", t, p) for p in range(4)] + [("CV", t)] + extra(hfl) + ([("PV", t, 0)] if hfl else []))
    if not phase:
        for t in range(ntiles):
            qk_items(t, vT, [("CV", t-1)])
            add(("MX", t), (t, 2, 0),
                [f"v_max3_f32 v{vX}, v{vT}, v{vT+1}, v{vM}", f"v_max3_f32 v{vX}, v{vT+2}, v{vT+3}, v{vX}"] + red_max() +
                [f"v_mul_f32 v{vZ}, s{sC}, v{vM}", f"v_sub_f32 v{vAl}, v{vMc}, v{vZ}", f"v_mov_b32 v{vMc}, v{vZ}", f"v_exp_f32 v{vAl}, v{vAl}"],
                after=[("DP", t, 0), ("DP", t, 1), ("CV", t-1)] + [("RS", t-1, k) for k in range(4)])
            add(("EX", t), (t, 3, 0), exp_ins(vT), after=[("MX", t)])
            add(("CV", t), (t, 3, 1), cvt_ins(vT) + [f"v_fma_f32 v{vL}, v{vL}, v{vAl}, v{vX}"], after=[("EX", t), ("PV", t-1, 1)])
            for k in range(4):
                add(("RS", t, k), (t, 4, k), [f"v_mul_f32 v{vO+8*k+i}, v{vO+8*k+i}, v{vAl}" for i in range(8)],
                    after=[("MX", t), ("PV", t-1, 1)])
            pv_items(t, t, lambda hfl: [("RS", t, 2*hfl), ("RS", t, 2*hfl+1)])
    else:
        for t in range(ntiles):
            qk_items(t, vT, [("ST", t-1)])
            add(("ST", t), (t, 2, 0),
                [f"ds_write_b128 v{vLw}, {r4(vT)}",
                 f"v_max3_f32 v{vM}, v{vT}, v{vT+1}, v{vM}", f"v_max3_f32 v{vM}, v{vT+2}, v{vT+3}, v{vM}",
                 f"v_add_u32 v{vLw}, 1024, v{vLw}"],
                after=[("DP", t, 0), ("DP", t, 1)])
        add(("RD", 0), (ntiles - 1, 3, 0), [f"ds_read_b128 {r4(vT+4)}, v{vLr}", f"v_add_u32 v{vLr}, 1024, v{vLr}"], after=[("ST", ntiles-1)])
        add(("MX",), (ntiles - 1, 3, 1), [f"v_mov_b32 v{vX}, v{vM}"] + red_max() + [f"v_mul_f32 v{vMc}, s{sC}, v{vM}"], after=[("ST", ntiles-1)])
        for t in range(ntiles):
            tp = ntiles + t
            ins = ["s_waitcnt lgkmcnt(0)"] + [f"v_fma_f32 v{vT+u}, v{vT+4+u}, s{sC}, -v{vMc}" for u in range(4)]
            if t + 1 < ntiles:
                ins += [f"ds_read_b128 {r4(vT+4)}, v{vLr}", f"v_add_u32 v{vLr}, 1024, v{vLr}"]
            ins += [f"v_exp_f32 v{vT+u}, v{vT+u}" for u in range(4)]
            add(("EX", t), (tp, 3, 0), ins, after=[("MX",), ("RD", 0), ("CV", t-1)])
            add(("CV", t), (tp, 3, 1), cvt_ins(vT) + [f"v_add_f32 v{vL}, v{vL}, v{vX}"], after=[("EX", t), ("PV", t-1, 1)])
            pv_items(t, tp, lambda hfl: [])
    keys = {it.key for it in items}
    for it in items:
        it.after = [a for a in it.after if a in keys]
    items.sort(key=lambda it: it.prio)
    pending_reads = {}
    for it in items:
        for r in it.reads:
            pending_reads.setdefault(r, set()).add(it.key)

    c = (128 ** -0.5) * math.log2(math.e)
    cbits = struct.unpack("<I", struct.pack("<f", c))[0]
    setup = [f"s_add_u32 s{sO}, s10, s3", f"s_addc_u32 s{sO+1}, s11, 0",
             f"s_mov_b32 s{sC}, 0x{cbits:08x}", f"s_mov_b32 s{sPlo}, 0x05040100", f"s_mov_b32 s{sPhi}, 0x07060302",
             f"v_mov_b32 v{vM}, 0xff800000", f"v_mov_b32 v{vMc}, 0xff800000", f"v_mov_b32 v{vL}, 0",
             f"v_bfe_i32 v{vM1}, v{vLane}, 3, 1", f"v_not_b32 v{vM0}, v{vM1}"]
    setup += [f"v_mov_b32 v{vO+i}, 0" for i in range(32)]
    setup += [f"s_mul_i32 s{sT}, s{sW}, {wstride}"]
    if phase:
        setup += [f"v_add_u32 v{vLw}, s{sT}, v{vOffV}", f"v_add_u32 v{vLr}, s{sT}, v{vOffV}"]
    setup += [f"v_and_b32 v{vX}, 7, v{vLane}", f"v_mul_u32_u24 v{vEa}, 528, v{vX}",
              f"v_lshrrev_b32 v{vY}, 3, v{vLane}", f"v_lshl_add_u32 v{vEa}, v{vY}, 6, v{vEa}",
              f"v_add_u32 v{vEa}, s{sT}, v{vEa}",
              f"s_lshl_b32 s{sT}, s{sW}, 6", f"s_add_u32 s{sT}, s{sT}, {mlbase}",
              f"v_lshlrev_b32 v{vEm}, 3, v{vX}", f"v_add_u32 v{vEm}, s{sT}, v{vEm}"]

    def depth(n):
        if ntail and n >= NL - ntail: return dtail
        if nhead and n < nhead: return dhead
        return D
    issued = []
    landed = set()
    done = set()
    def wait_for(tag):
        if tag in landed:
            return
        p = issued.index(tag)
        cnt = len(issued) - 1 - p
        assert cnt <= 63
        e(f"s_waitcnt vmcnt({cnt})")
        landed.update(issued[:p + 1])
    def ready(it):
        return all(l in landed for l in it.loads) and all(a in done for a in it.after)
    def run(it):
        for s in it.ins:
            e(s)
        done.add(it.key)
        items.remove(it)
        for r in it.reads:
            pending_reads[r].discard(it.key)
    owner = {}
    blocks = []
    setup_done = False
    for n, l in enumerate(loads):
        cur = []
        blocks.append(cur)
        if n - depth(n) >= 0:
            if not setup_done:
                for s in setup: e(s)
                setup_done = True
                if stamp:
                    wait_for(loads[n - depth(n)])
                    e("s_memrealtime s[46:47]")
                    e("s_waitcnt lgkmcnt(0)")
            wait_for(loads[n - depth(n)])
        d = dest(l)
        if d in owner:
            prev = owner[d]
            while pending_reads.get(prev):
                cand = [it for it in items[:64] if ready(it)]
                assert cand, f"slot {n}: buffer of {prev} still unread and nothing is ready"
                if verbose: print(f"slot {n}: forced {cand[0].key}", file=sys.stderr)
                run(cand[0])
        owner[d] = l
        if l[0] == "V" and l == loads[idx[('V', 0, 0)]] and n < 64 and False:
            pass
        e(load_text(l))
        issued.append(l)
        if n == 0:
            e(f"s_add_u32 s{sQ}, s4, s3")
            e(f"s_addc_u32 s{sQ+1}, s5, 0")
            e(f"s_add_u32 s{sV}, s8, s{sT}")
            e(f"s_addc_u32 s{sV+1}, s9, 0")
        if n == qpos - 1:
            e(f"buffer_load_dwordx4 {r4(vQ)}, v{vOffQ}, s[{sQ}:{sQ+3}], 0 offen")
            issued.append("Q0")
            e(f"buffer_load_dwordx4 {r4(vQ+4)}, v{vOffQ}, s[{sQ}:{sQ+3}], 0 offen offset:128")
            issued.append("Q")
        last_of_tile = (l[2] == 7) and (phase or l[0] == "V")
        if last_of_tile and n + 1 < NL:
            if phase and l[0] == "K" and l[1] == ntiles - 1:
                e(f"s_mov_b32 s{sA}, s{sA0}")
                e(f"s_add_u32 s{sB}, s{sA0}, 4096")
            else:
                e(f"s_add_u32 s{sA}, s{sA}, {step}")
                e(f"s_add_u32 s{sB}, s{sB}, {step}")
        used = 0
        while setup_done:
            cand = [it for it in items[:64] if ready(it) and (used == 0 or used + len(it.ins) <= budget)]
            if not cand:
                break
            used += len(cand[0].ins)
            run(cand[0])
            if used >= budget:
                break
    period = (8 if phase else 16) * max(NBK, NBV)
    body, info = roll(blocks, period, sCnt, "L_loop")
    if verbose: print("loops (first slot, count):", info, "of", NL, "slots; period", period, file=sys.stderr)
    out += body
    cur = out
    while items:
        cand = [it for it in items if ready(it)]
        if cand:
            run(cand[0])
        else:
            nxt = next(t for t in issued if t not in landed)
            best = None
            for it in items:
                if all(a in done for a in it.after):
                    p = max(issued.index(x) for x in it.loads)
                    best = p if best is None else min(best, p)
            assert best is not None
            wait_for(issued[best])

    e(f"v_mov_b32 v{vY}, v{vL}")
    e(f"v_permlane16_swap_b32 v{vL}, v{vY}")
    e(f"v_add_f32 v{vL}, v{vL}, v{vY}")
    e(f"v_mov_b32 v{vY}, v{vL}")
    e(f"v_permlane32_swap_b32 v{vL}, v{vY}")
    e(f"v_add_f32 v{vX}, v{vL}, v{vY}")
    e(f"v_add_f32_dpp v{vL}, v{vX}, v{vX} row_ror:8 row_mask:0xf bank_mask:0xf")
    assert vL == vMc + 1 and vMc % 2 == 0
    e("s_mov_b64 exec, 0xff")
    e(f"ds_write_b64 v{vEm}, v[{vMc}:{vMc+1}]")
    e("s_mov_b64 exec, -1")
    vTt = vA
    for x in range(4):
        r, j0 = x >> 1, (x & 1) * 4
        for j in range(j0, j0 + 4):
            e(f"v_add_f32_dpp v{vTt+8*r+j}, v{vO+4*j+r}, v{vO+4*j+r} row_ror:8 row_mask:0xf bank_mask:0x3")
        for j in range(j0, j0 + 4):
            e(f"v_add_f32_dpp v{vTt+8*r+j}, v{vO+4*j+2+r}, v{vO+4*j+2+r} row_ror:8 row_mask:0xf bank_mask:0xc")
        e(f"ds_write_b128 v{vEa}, {r4(vTt+4*x)} offset:{x*16}")
    NT = min(NW, 4) * 64
    CH = 256 // NT
    tpq = NT // 8
    lg = tpq.bit_length() - 1
    vq, va, vb = vX, vY, vZ
    e(f"v_lshrrev_b32 v{vq}, {lg}, v0")
    e(f"v_and_b32 v{va}, {tpq-1}, v0")
    e(f"v_lshlrev_b32 v{va}, {4 + (CH.bit_length()-1)}, v{va}")
    e(f"v_mul_u32_u24 v{vb}, 528, v{vq}")
    e(f"v_add_u32 v{va}, v{va}, v{vb}")
    e(f"v_lshlrev_b32 v{vb}, 3, v{vq}")
    e(f"v_add_u32 v{vb}, {mlbase}, v{vb}")
    e("s_waitcnt lgkmcnt(0)")
    e("s_barrier")
    if NW > 4:
        e(f"s_cmp_ge_u32 s{sW}, 4")
        e("s_cbranch_scc1 L_fin")
    vML = vS
    vD = vO
    assert 2 * NW <= 16 and 4 * NW * CH <= 64
    for w in range(NW):
        e(f"ds_read_b64 v[{vML+2*w}:{vML+2*w+1}], v{vb} offset:{w*64}")
    nrd = 0
    for w in range(NW):
        if w * wstride + 64 > 65535:
            if w * wstride % 65536 == 0 or (w - 1) * wstride + 64 <= 65535:
                e(f"v_add_u32 v{va}, {65536 if wstride <= 65536 else wstride}, v{va}")
        for cch in range(CH):
            off = (w * wstride) % 65536 + cch * 16
            e(f"ds_read_b128 {r4(vD+4*(w*CH+cch))}, v{va} offset:{off}")
            nrd += 1
    e(f"s_waitcnt lgkmcnt({min(nrd,15)})")
    if NW == 1:
        e(f"v_rcp_f32 v{vL}, v{vML+1}")
        e("s_waitcnt lgkmcnt(0)")
        for x in range(4 * CH):
            e(f"v_mul_f32 v{vD+x}, v{vD+x}, v{vL}")
    else:
        e(f"v_max_f32 v{vM}, v{vML}, v{vML+2}")
        for w in range(2, NW, 2):
            e(f"v_max3_f32 v{vM}, v{vM}, v{vML+2*w}, v{vML+2*w+2}")
        for w in range(NW):
            e(f"v_sub_f32 v{vML+2*w}, v{vML+2*w}, v{vM}")
        for w in range(NW):
            e(f"v_exp_f32 v{vML+2*w}, v{vML+2*w}")
        e(f"v_mul_f32 v{vL}, v{vML}, v{vML+1}")
        for w in range(1, NW):
            e(f"v_fmac_f32 v{vL}, v{vML+2*w}, v{vML+2*w+1}")
        e(f"v_rcp_f32 v{vL}, v{vL}")
        for w in range(NW):
            e(f"v_mul_f32 v{vML+2*w}, v{vML+2*w}, v{vL}")
        e("s_waitcnt lgkmcnt(0)")
        for x in range(4 * CH):
            e(f"v_mul_f32 v{vD+x}, v{vD+x}, v{vML}")
        for w in range(1, NW):
            for x in range(4 * CH):
                e(f"v_fmac_f32 v{vD+x}, v{vD+4*w*CH+x}, v{vML+2*w}")
    for x in range(2 * CH):
        e(f"v_cvt_pk_bf16_f32 v{vT+x}, v{vD+2*x}, v{vD+2*x+1}")
    e(f"v_lshlrev_b32 v{va}, {3 + (CH.bit_length()-1)}, v0")
    if CH == 1:
        e(f"buffer_store_dwordx2 v[{vT}:{vT+1}], v{va}, s[{sO}:{sO+3}], 0 offen")
    else:
        for x in range(CH // 2):
            e(f"buffer_store_dwordx4 {r4(vT+4*x)}, v{va}, s[{sO}:{sO+3}], 0 offen" + (f" offset:{16*x}" if x else ""))
    out.append("L_fin:")
    if stamp:
        for s in f"""s_waitcnt vmcnt(0)
s_memrealtime s[42:43]
s_load_dwordx4 s[48:51], s[0:1], 32
s_getreg_b32 s52, hwreg(HW_REG_XCC_ID)
s_getreg_b32 s53, hwreg(HW_REG_HW_ID)
s_waitcnt lgkmcnt(0)
s_mov_b64 exec, 1
s_mul_i32 s45, s2, {NW}
s_add_u32 s45, s45, s{sW}
s_lshl_b32 s45, s45, 5
v_mov_b32 v1, s45
v_mov_b32 v4, s40
v_mov_b32 v5, s46
v_mov_b32 v6, s42
v_mov_b32 v7, s52
v_mov_b32 v8, s53
v_mov_b32 v9, 0x12345678
global_store_dwordx4 v1, v[4:7], s[50:51]
global_store_dwordx2 v1, v[8:9], s[50:51] offset:16""".split("\n"):
            e(s)
    out.append("L_end:")
    out.append("    s_endpgm")
    acc = min(256, (nv + 3) // 4 * 4)
    out.append('.section .rodata,"a"')
    out.append(".p2align 6")
    out.append(f".amdhsa_kernel {NAME}")
    out.append(f"  .amdhsa_next_free_vgpr {nv}")
    out.append(f"  .amdhsa_next_free_sgpr 64")
    out.append(f"  .amdhsa_accum_offset {acc}")
    out.append("  .amdhsa_group_segment_fixed_size 0")
    out.append("  .amdhsa_kernarg_size 48")
    out.append("  .amdhsa_user_sgpr_count 2")
    out.append("  .amdhsa_user_sgpr_kernarg_segment_ptr 1")
    out.append("  .amdhsa_system_sgpr_workgroup_id_x 1")
    out.append(".end_amdhsa_kernel")
    assert nv <= 256
    return "\n".join(out) + "\n"

if __name__ == "__main__":
    ap = argparse.ArgumentParser()
    ap.add_argument("-o", default="/dev/stdout")
    ap.add_argument("--nw", type=int, default=4)
    ap.add_argument("--d", type=int, default=5)
    ap.add_argument("--mode", default="online")
    ap.add_argument("--nbk", type=int, default=1)
    ap.add_argument("--nbv", type=int, default=1)
    ap.add_argument("--budget", type=int, default=10)
    ap.add_argument("--dtail", type=int, default=0)
    ap.add_argument("--ntail", type=int, default=0)
    ap.add_argument("--dhead", type=int, default=0)
    ap.add_argument("--nhead", type=int, default=0)
    ap.add_argument("--ldsmin", type=int, default=0)
    ap.add_argument("--flags", default="nt")
    ap.add_argument("--stamp", action="store_true")
    ap.add_argument("-v", action="store_true")
    a = ap.parse_args()
    open(a.o, "w").write(gen(a.nw, a.d, a.mode, a.nbk, a.nbv, a.budget, a.stamp, a.dtail, a.ntail, a.dhead, a.nhead,
                             a.flags, a.ldsmin, verbose=a.v))
```

```python
import sys, argparse, struct, math
from asmlib import Haz, roll

HEADER = """; Kernarg layout for this problem (48 bytes, ptrs only, base s[0:1]):
"""
NAME = "standalone__mha_softmax__sampling_kernel"

def r4(x): return f"v[{x}:{x+3}]"

class Item:
    def __init__(self, key, prio, ins, loads=(), after=(), reads=()):
        self.key, self.prio, self.ins = key, prio, ins
        self.loads, self.after, self.reads = list(loads), list(after), list(reads)

def gen(NW=4, D=5, mode="online", NBK=1, NBV=1, budget=10, stamp=False, dtail=0, ntail=0, dhead=0, nhead=0,
        flags="nt", ldsmin=0, qpos=2, verbose=False, ubits=None, wbits=None, vord=(0, 2, 1, 3, 4, 6, 5, 7), Dodd=None):
    phase = mode == "phase"
    ntiles = 128 // NW
    out = []
    H = Haz()
    cur = out
    def e(s):
        H.emit(s, cur)
    if phase:
        wstride = ntiles * 1024
        mlbase = NW * wstride
    else:
        wstride = 4224
        mlbase = NW * wstride
    lds_bytes = max(mlbase + NW * 64, ldsmin)
    out.append(HEADER.rstrip())
    out.append(f"; @launch grid=(256,1,1) block=({NW*64},1,1) lds={lds_bytes}")
    out.append('.amdgcn_target "amdgcn-amd-amdhsa--gfx950"')
    out.append(".text")
    out.append(f".globl {NAME}")
    out.append(".p2align 8")
    out.append(f".type {NAME},@function")
    out.append(f"{NAME}:")
    sK, sV, sQ, sO = 12, 16, 20, 24
    sW, sT, sCnt, sC, sPlo, sPhi = 28, 29, 30, 31, 32, 33
    sU, sA0 = 34, 38
    lgw = NW.bit_length() - 1
    if ubits is None: ubits = [11, 12]
    if wbits is None: wbits = [b for b in range(11, 13 + lgw) if b not in ubits]
    assert sorted(ubits + wbits) == list(range(11, 13 + lgw)) and len(ubits) == 2
    uoff = [((u & 1) << ubits[0]) | ((u >> 1) << ubits[1]) for u in range(4)]
    ubase = {}
    for u in range(4):
        b = uoff[u] & ~2048
        if b not in ubase: ubase[b] = sU + len(ubase)
    def usg(u): return ubase[uoff[u] & ~2048], uoff[u] & 2048
    def set_u():
        for b, sg in ubase.items():
            e(f"s_add_u32 s{sg}, s{sA0}, {b}" if b else f"s_mov_b32 s{sg}, s{sA0}")
    vLane, vOffK, vOffV, vOffQ = 1, 2, 3, 4
    vM, vMc, vL, vX, vY, vAl, vZ = 5, 6, 7, 8, 9, 10, 11
    vM0, vM1, vLw, vLr = 12, 13, 14, 15
    vT = 16
    vB = 24
    vPa = 28
    vEa, vEm = 30, 31
    vQ = 32
    vS = 40
    vO = 56
    vA = 88
    vKb = 120
    vVb = vKb + NBK * 32
    nv = vVb + NBV * 32
    if phase:
        assert NBK == NBV
        vVb = vKb
        nv = vKb + NBK * 32
    assert nv <= 512

    e("s_cmp_ge_u32 s2, 256")
    e("s_cbranch_scc1 L_end")
    if stamp:
        e("s_memrealtime s[40:41]")
    e("s_load_dwordx4 s[4:7], s[0:1], 0")
    e("s_load_dwordx4 s[8:11], s[0:1], 16")
    if Dodd is not None:
        e("s_getreg_b32 s39, hwreg(HW_REG_XCC_ID)")
    e(f"v_readfirstlane_b32 s{sW}, v0")
    e(f"v_and_b32 v{vLane}, 63, v0")
    e(f"v_bfe_u32 v{vX}, v{vLane}, 2, 2")
    e(f"v_lshlrev_b32 v{vX}, 8, v{vX}")
    e(f"v_bfe_u32 v{vY}, v{vLane}, 1, 1")
    e(f"v_lshl_add_u32 v{vX}, v{vY}, 10, v{vX}")
    e(f"v_and_b32 v{vY}, 1, v{vLane}")
    e(f"v_lshl_add_u32 v{vX}, v{vY}, 6, v{vX}")
    e(f"v_lshrrev_b32 v{vZ}, 4, v{vLane}")
    e(f"v_lshl_add_u32 v{vOffK}, v{vZ}, 4, v{vX}")
    e(f"v_lshlrev_b32 v{vOffV}, 4, v{vLane}")
    e(f"v_and_b32 v{vX}, 7, v{vLane}")
    e(f"v_lshlrev_b32 v{vX}, 8, v{vX}")
    e(f"v_bfe_u32 v{vY}, v{vLane}, 3, 1")
    e(f"v_lshl_add_u32 v{vX}, v{vY}, 6, v{vX}")
    e(f"v_lshl_add_u32 v{vOffQ}, v{vZ}, 4, v{vX}")
    e(f"s_lshr_b32 s{sW}, s{sW}, 6")
    e(f"s_lshl_b32 s{sT}, s2, 20")
    e(f"s_mov_b32 s{sK+2}, 0x100000")
    e(f"s_mov_b32 s{sK+3}, 0x20000")
    e(f"s_mov_b32 s{sV+2}, 0x100000")
    e(f"s_mov_b32 s{sV+3}, 0x20000")
    e(f"s_mov_b32 s{sQ+2}, 2048")
    e(f"s_mov_b32 s{sQ+3}, 0x20000")
    e(f"s_mov_b32 s{sO+2}, 2048")
    e(f"s_mov_b32 s{sO+3}, 0x20000")
    if wbits == list(range(wbits[0], wbits[0] + lgw)) if wbits else True:
        e(f"s_lshl_b32 s{sA0}, s{sW}, {wbits[0] if wbits else 0}")
    else:
        e(f"s_mov_b32 s{sA0}, 0")
        for i, b in enumerate(wbits):
            e(f"s_bfe_u32 s3, s{sW}, {(1 << 16) | i}")
            e(f"s_lshl_b32 s3, s3, {b}")
            e(f"s_or_b32 s{sA0}, s{sA0}, s3")
    set_u()
    e(f"s_lshl_b32 s3, s2, 11")
    e("s_waitcnt lgkmcnt(0)")
    e(f"s_add_u32 s{sK}, s6, s{sT}")
    e(f"s_addc_u32 s{sK+1}, s7, 0")
    step = NW * 8192

    def main_body(Dpat, tag):
        nonlocal cur
        VORD = list(vord)
        loads = []
        if phase:
            for t in range(ntiles):
                loads += [("K", t, x) for x in range(8)]
            for t in range(ntiles):
                loads += [("V", t, x) for x in range(8)]
        else:
            for t in range(ntiles):
                loads += [("K", t, x) for x in range(8)] + [("V", t, x) for x in range(8)]
        idx = {l: n for n, l in enumerate(loads)}
        NL = len(loads)
        def kreg(t, x): return vKb + (t % NBK) * 32 + x * 4
        def vreg(t, row):
            if phase:
                return vVb + ((t + ntiles) % NBV) * 32 + VORD.index(row) * 4
            return vVb + (t % NBV) * 32 + VORD.index(row) * 4
        def dest(l):
            k, t, x = l
            return kreg(t, x) if k == "K" else vreg(t, VORD[x])
        def load_text(l):
            k, t, x = l
            if k == "K":
                u, hf = x >> 1, x & 1
                so, off = usg(u)
                off += hf * 128
                return f"buffer_load_dwordx4 {r4(dest(l))}, v{vOffK}, s[{sK}:{sK+3}], s{so} offen" + (f" offset:{off}" if off else "") + f" {flags}"
            row = VORD[x]
            so, off = usg(row >> 1)
            off += (row & 1) * 1024
            return f"buffer_load_dwordx4 {r4(dest(l))}, v{vOffV}, s[{sV}:{sV+3}], s{so} offen" + (f" offset:{off}" if off else "") + f" {flags}"

        items = []
        def add(*a, **k):
            items.append(Item(*a, **k))
        def qk_items(t, tset, free_after):
            for u in range(4):
                add(("QK", t, u), (t, 0, u), [
                    f"v_mfma_f32_16x16x32_bf16 {r4(vS+4*u)}, {r4(kreg(t,2*u))}, {r4(vQ)}, 0",
                    f"v_mfma_f32_16x16x32_bf16 {r4(vS+4*u)}, {r4(kreg(t,2*u+1))}, {r4(vQ+4)}, {r4(vS+4*u)}"],
                    loads=[("K", t, 2*u), ("K", t, 2*u+1), "Q"], after=[("DP", t-1, u >> 1)],
                    reads=[("K", t, 2*u), ("K", t, 2*u+1)])
            for p in range(2):
                ins = []
                for u in (2*p, 2*p+1):
                    ins.append(f"v_add_f32_dpp v{tset+u}, v{vS+4*u+1}, v{vS+4*u} row_ror:8 row_mask:0xf bank_mask:0x3")
                for u in (2*p, 2*p+1):
                    ins.append(f"v_add_f32_dpp v{tset+u}, v{vS+4*u+2}, v{vS+4*u+3} row_ror:8 row_mask:0xf bank_mask:0xc")
                add(("DP", t, p), (t, 1, p), ins, after=[("QK", t, 2*p), ("QK", t, 2*p+1)] + free_after)
        def red_max():
            return [f"v_mov_b32 v{vY}, v{vX}",
                    f"v_permlane16_swap_b32 v{vX}, v{vY}",
                    f"v_max_f32 v{vX}, v{vX}, v{vY}",
                    f"v_mov_b32 v{vY}, v{vX}",
                    f"v_permlane32_swap_b32 v{vX}, v{vY}",
                    f"v_max_f32 v{vX}, v{vX}, v{vY}",
                    f"v_max_f32_dpp v{vM}, v{vX}, v{vX} row_ror:8 row_mask:0xf bank_mask:0xf"]
        def exp_ins(ts):
            return [f"v_fma_f32 v{ts+u}, v{ts+u}, s{sC}, -v{vMc}" for u in range(4)] + \
                   [f"v_exp_f32 v{ts+u}, v{ts+u}" for u in range(4)]
        def cvt_ins(ts):
            return [f"v_cvt_pk_bf16_f32 v{vPa}, v{ts}, v{ts+1}",
                    f"v_cvt_pk_bf16_f32 v{vPa+1}, v{ts+2}, v{ts+3}",
                    f"v_add_f32 v{vX}, v{ts}, v{ts+1}",
                    f"v_add_f32 v{vY}, v{ts+2}, v{ts+3}",
                    f"v_and_b32 v{vB}, v{vPa}, v{vM0}",
                    f"v_and_b32 v{vB+1}, v{vPa+1}, v{vM0}",
                    f"v_and_b32 v{vB+2}, v{vPa}, v{vM1}",
                    f"v_and_b32 v{vB+3}, v{vPa+1}, v{vM1}",
                    f"v_add_f32 v{vX}, v{vX}, v{vY}"]
        def pv_items(t, tp, extra):
            pairs = [(0, 2, 0), (1, 3, 2), (4, 6, 1), (5, 7, 3)]
            for p, (a, b, slot) in enumerate(pairs):
                ins = []
                for j in range(8):
                    sel = sPhi if j & 1 else sPlo
                    ins.append(f"v_perm_b32 v{vA+4*j+slot}, v{vreg(t,b)+(j>>1)}, v{vreg(t,a)+(j>>1)}, s{sel}")
                lds_ = [("V", t, VORD.index(a)), ("V", t, VORD.index(b))]
                add(("PM", t, p), (tp, 5, p), ins, loads=lds_, after=[("PV", t-1, 1)], reads=lds_)
            for hfl in range(2):
                ins = [f"v_mfma_f32_16x16x32_bf16 {r4(vO+4*j)}, {r4(vA+4*j)}, {r4(vB)}, {r4(vO+4*j)}" for j in range(4*hfl, 4*hfl+4)]
                add(("PV", t, hfl), (tp, 6, hfl), ins, after=[("PM", t, p) for p in range(4)] + [("CV", t)] + extra(hfl) + ([("PV", t, 0)] if hfl else []))
        if not phase:
            for t in range(ntiles):
                qk_items(t, vT, [("CV", t-1)])
                add(("MX", t), (t, 2, 0),
                    [f"v_max3_f32 v{vX}, v{vT}, v{vT+1}, v{vM}", f"v_max3_f32 v{vX}, v{vT+2}, v{vT+3}, v{vX}"] + red_max() +
                    [f"v_mul_f32 v{vZ}, s{sC}, v{vM}", f"v_sub_f32 v{vAl}, v{vMc}, v{vZ}", f"v_mov_b32 v{vMc}, v{vZ}", f"v_exp_f32 v{vAl}, v{vAl}"],
                    after=[("DP", t, 0), ("DP", t, 1), ("CV", t-1)] + [("RS", t-1, k) for k in range(4)])
                add(("EX", t), (t, 3, 0), exp_ins(vT), after=[("MX", t)])
                add(("CV", t), (t, 3, 1), cvt_ins(vT) + [f"v_fma_f32 v{vL}, v{vL}, v{vAl}, v{vX}"], after=[("EX", t), ("PV", t-1, 1)])
                for k in range(4):
                    add(("RS", t, k), (t, 4, k), [f"v_mul_f32 v{vO+8*k+i}, v{vO+8*k+i}, v{vAl}" for i in range(8)],
                        after=[("MX", t), ("PV", t-1, 1)])
                pv_items(t, t, lambda hfl: [("RS", t, 2*hfl), ("RS", t, 2*hfl+1)])
        else:
            for t in range(ntiles):
                qk_items(t, vT, [("ST", t-1)])
                add(("ST", t), (t, 2, 0),
                    [f"ds_write_b128 v{vLw}, {r4(vT)}",
                     f"v_max3_f32 v{vM}, v{vT}, v{vT+1}, v{vM}", f"v_max3_f32 v{vM}, v{vT+2}, v{vT+3}, v{vM}",
                     f"v_add_u32 v{vLw}, 1024, v{vLw}"],
                    after=[("DP", t, 0), ("DP", t, 1)])
            add(("RD", 0), (ntiles - 1, 3, 0), [f"ds_read_b128 {r4(vT+4)}, v{vLr}", f"v_add_u32 v{vLr}, 1024, v{vLr}"], after=[("ST", ntiles-1)])
            add(("MX",), (ntiles - 1, 3, 1), [f"v_mov_b32 v{vX}, v{vM}"] + red_max() + [f"v_mul_f32 v{vMc}, s{sC}, v{vM}"], after=[("ST", ntiles-1)])
            for t in range(ntiles):
                tp = ntiles + t
                ins = ["s_waitcnt lgkmcnt(0)"] + [f"v_fma_f32 v{vT+u}, v{vT+4+u}, s{sC}, -v{vMc}" for u in range(4)]
                if t + 1 < ntiles:
                    ins += [f"ds_read_b128 {r4(vT+4)}, v{vLr}", f"v_add_u32 v{vLr}, 1024, v{vLr}"]
                ins += [f"v_exp_f32 v{vT+u}, v{vT+u}" for u in range(4)]
                add(("EX", t), (tp, 3, 0), ins, after=[("MX",), ("RD", 0), ("CV", t-1)])
                add(("CV", t), (tp, 3, 1), cvt_ins(vT) + [f"v_add_f32 v{vL}, v{vL}, v{vX}"], after=[("EX", t), ("PV", t-1, 1)])
                pv_items(t, tp, lambda hfl: [])
        keys = {it.key for it in items}
        for it in items:
            it.after = [a for a in it.after if a in keys]
        items.sort(key=lambda it: it.prio)
        pending_reads = {}
        for it in items:
            for r in it.reads:
                pending_reads.setdefault(r, set()).add(it.key)

        c = (128 ** -0.5) * math.log2(math.e)
        cbits = struct.unpack("<I", struct.pack("<f", c))[0]
        setup = [f"s_add_u32 s{sO}, s10, s3", f"s_addc_u32 s{sO+1}, s11, 0",
                 f"s_mov_b32 s{sC}, 0x{cbits:08x}", f"s_mov_b32 s{sPlo}, 0x05040100", f"s_mov_b32 s{sPhi}, 0x07060302",
                 f"v_mov_b32 v{vM}, 0xff800000", f"v_mov_b32 v{vMc}, 0xff800000", f"v_mov_b32 v{vL}, 0",
                 f"v_bfe_i32 v{vM1}, v{vLane}, 3, 1", f"v_not_b32 v{vM0}, v{vM1}"]
        setup += [f"v_mov_b32 v{vO+i}, 0" for i in range(32)]
        setup += [f"s_mul_i32 s{sT}, s{sW}, {wstride}"]
        if phase:
            setup += [f"v_add_u32 v{vLw}, s{sT}, v{vOffV}", f"v_add_u32 v{vLr}, s{sT}, v{vOffV}"]
        setup += [f"v_and_b32 v{vX}, 7, v{vLane}", f"v_mul_u32_u24 v{vEa}, 528, v{vX}",
                  f"v_lshrrev_b32 v{vY}, 3, v{vLane}", f"v_lshl_add_u32 v{vEa}, v{vY}, 6, v{vEa}",
                  f"v_add_u32 v{vEa}, s{sT}, v{vEa}",
                  f"s_lshl_b32 s{sT}, s{sW}, 6", f"s_add_u32 s{sT}, s{sT}, {mlbase}",
                  f"v_lshlrev_b32 v{vEm}, 3, v{vX}", f"v_add_u32 v{vEm}, s{sT}, v{vEm}"]

        def depth(n):
            if ntail and n >= NL - ntail: return dtail
            if nhead and n < nhead: return dhead
            return Dpat[n % len(Dpat)]
        issued = []
        landed = set()
        done = set()
        def wait_for(tag):
            if tag in landed:
                return
            p = issued.index(tag)
            cnt = len(issued) - 1 - p
            assert cnt <= 63
            e(f"s_waitcnt vmcnt({cnt})")
            landed.update(issued[:p + 1])
        def ready(it):
            return all(l in landed for l in it.loads) and all(a in done for a in it.after)
        def run(it):
            for s in it.ins:
                e(s)
            done.add(it.key)
            items.remove(it)
            for r in it.reads:
                pending_reads[r].discard(it.key)
        owner = {}
        blocks = []
        setup_done = False
        for n, l in enumerate(loads):
            cur = []
            blocks.append(cur)
            if n - depth(n) >= 0:
                if not setup_done:
                    for s in setup: e(s)
                    setup_done = True
                    if stamp:
                        wait_for(loads[n - depth(n)])
                        e("s_memrealtime s[46:47]")
                        e("s_waitcnt lgkmcnt(0)")
                wait_for(loads[n - depth(n)])
            d = dest(l)
            if d in owner:
                prev = owner[d]
                while pending_reads.get(prev):
                    cand = [it for it in items[:64] if ready(it)]
                    assert cand, f"slot {n}: buffer of {prev} still unread and nothing is ready"
                    if verbose: print(f"slot {n}: forced {cand[0].key}", file=sys.stderr)
                    run(cand[0])
            owner[d] = l
            if l[0] == "V" and l == loads[idx[('V', 0, 0)]] and n < 64 and False:
                pass
            e(load_text(l))
            issued.append(l)
            if n == 0:
                e(f"s_add_u32 s{sQ}, s4, s3")
                e(f"s_addc_u32 s{sQ+1}, s5, 0")
                e(f"s_add_u32 s{sV}, s8, s{sT}")
                e(f"s_addc_u32 s{sV+1}, s9, 0")
            if n == qpos - 1:
                e(f"buffer_load_dwordx4 {r4(vQ)}, v{vOffQ}, s[{sQ}:{sQ+3}], 0 offen")
                issued.append("Q0")
                e(f"buffer_load_dwordx4 {r4(vQ+4)}, v{vOffQ}, s[{sQ}:{sQ+3}], 0 offen offset:128")
                issued.append("Q")
            last_of_tile = (l[2] == 7) and (phase or l[0] == "V")
            if last_of_tile and n + 1 < NL:
                if phase and l[0] == "K" and l[1] == ntiles - 1:
                    set_u()
                else:
                    for sg in ubase.values():
                        e(f"s_add_u32 s{sg}, s{sg}, {step}")
            used = 0
            while setup_done:
                cand = [it for it in items[:64] if ready(it) and (used == 0 or used + len(it.ins) <= budget)]
                if not cand:
                    break
                used += len(cand[0].ins)
                run(cand[0])
                if used >= budget:
                    break
        period = (8 if phase else 16) * max(NBK, NBV)
        body, info = roll(blocks, period, sCnt, f"L_loop{tag}_")
        if verbose: print("loops (first slot, count):", info, "of", NL, "slots; period", period, file=sys.stderr)
        out.extend(body)
        cur = out
        while items:
            cand = [it for it in items if ready(it)]
            if cand:
                run(cand[0])
            else:
                nxt = next(t for t in issued if t not in landed)
                best = None
                for it in items:
                    if all(a in done for a in it.after):
                        p = max(issued.index(x) for x in it.loads)
                        best = p if best is None else min(best, p)
                assert best is not None
                wait_for(issued[best])

        e(f"v_mov_b32 v{vY}, v{vL}")
        e(f"v_permlane16_swap_b32 v{vL}, v{vY}")
        e(f"v_add_f32 v{vL}, v{vL}, v{vY}")
        e(f"v_mov_b32 v{vY}, v{vL}")
        e(f"v_permlane32_swap_b32 v{vL}, v{vY}")
        e(f"v_add_f32 v{vX}, v{vL}, v{vY}")
        e(f"v_add_f32_dpp v{vL}, v{vX}, v{vX} row_ror:8 row_mask:0xf bank_mask:0xf")
        assert vL == vMc + 1 and vMc % 2 == 0
        e("s_mov_b64 exec, 0xff")
        e(f"ds_write_b64 v{vEm}, v[{vMc}:{vMc+1}]")
        e("s_mov_b64 exec, -1")
        vTt = vA
        for x in range(4):
            r, j0 = x >> 1, (x & 1) * 4
            for j in range(j0, j0 + 4):
                e(f"v_add_f32_dpp v{vTt+8*r+j}, v{vO+4*j+r}, v{vO+4*j+r} row_ror:8 row_mask:0xf bank_mask:0x3")
            for j in range(j0, j0 + 4):
                e(f"v_add_f32_dpp v{vTt+8*r+j}, v{vO+4*j+2+r}, v{vO+4*j+2+r} row_ror:8 row_mask:0xf bank_mask:0xc")
            e(f"ds_write_b128 v{vEa}, {r4(vTt+4*x)} offset:{x*16}")
        NT = min(NW, 4) * 64
        CH = 256 // NT
        tpq = NT // 8
        lg = tpq.bit_length() - 1
        vq, va, vb = vX, vY, vZ
        e(f"v_lshrrev_b32 v{vq}, {lg}, v0")
        e(f"v_and_b32 v{va}, {tpq-1}, v0")
        e(f"v_lshlrev_b32 v{va}, {4 + (CH.bit_length()-1)}, v{va}")
        e(f"v_mul_u32_u24 v{vb}, 528, v{vq}")
        e(f"v_add_u32 v{va}, v{va}, v{vb}")
        e(f"v_lshlrev_b32 v{vb}, 3, v{vq}")
        e(f"v_add_u32 v{vb}, {mlbase}, v{vb}")
        e("s_waitcnt lgkmcnt(0)")
        e("s_barrier")
        if NW > 4:
            e(f"s_cmp_ge_u32 s{sW}, 4")
            e(f"s_cbranch_scc1 L_fin{tag}")
        vML = vS
        vD = vO
        assert 2 * NW <= 16 and 4 * NW * CH <= 64
        for w in range(NW):
            e(f"ds_read_b64 v[{vML+2*w}:{vML+2*w+1}], v{vb} offset:{w*64}")
        nrd = 0
        for w in range(NW):
            if w * wstride + 64 > 65535:
                if w * wstride % 65536 == 0 or (w - 1) * wstride + 64 <= 65535:
                    e(f"v_add_u32 v{va}, {65536 if wstride <= 65536 else wstride}, v{va}")
            for cch in range(CH):
                off = (w * wstride) % 65536 + cch * 16
                e(f"ds_read_b128 {r4(vD+4*(w*CH+cch))}, v{va} offset:{off}")
                nrd += 1
        e(f"s_waitcnt lgkmcnt({min(nrd,15)})")
        if NW == 1:
            e(f"v_rcp_f32 v{vL}, v{vML+1}")
            e("s_waitcnt lgkmcnt(0)")
            for x in range(4 * CH):
                e(f"v_mul_f32 v{vD+x}, v{vD+x}, v{vL}")
        else:
            e(f"v_max_f32 v{vM}, v{vML}, v{vML+2}")
            for w in range(2, NW, 2):
                e(f"v_max3_f32 v{vM}, v{vM}, v{vML+2*w}, v{vML+2*w+2}")
            for w in range(NW):
                e(f"v_sub_f32 v{vML+2*w}, v{vML+2*w}, v{vM}")
            for w in range(NW):
                e(f"v_exp_f32 v{vML+2*w}, v{vML+2*w}")
            e(f"v_mul_f32 v{vL}, v{vML}, v{vML+1}")
            for w in range(1, NW):
                e(f"v_fmac_f32 v{vL}, v{vML+2*w}, v{vML+2*w+1}")
            e(f"v_rcp_f32 v{vL}, v{vL}")
            for w in range(NW):
                e(f"v_mul_f32 v{vML+2*w}, v{vML+2*w}, v{vL}")
            e("s_waitcnt lgkmcnt(0)")
            for x in range(4 * CH):
                e(f"v_mul_f32 v{vD+x}, v{vD+x}, v{vML}")
            for w in range(1, NW):
                for x in range(4 * CH):
                    e(f"v_fmac_f32 v{vD+x}, v{vD+4*w*CH+x}, v{vML+2*w}")
        for x in range(2 * CH):
            e(f"v_cvt_pk_bf16_f32 v{vT+x}, v{vD+2*x}, v{vD+2*x+1}")
        e(f"v_lshlrev_b32 v{va}, {3 + (CH.bit_length()-1)}, v0")
        if CH == 1:
            e(f"buffer_store_dwordx2 v[{vT}:{vT+1}], v{va}, s[{sO}:{sO+3}], 0 offen")
        else:
            for x in range(CH // 2):
                e(f"buffer_store_dwordx4 {r4(vT+4*x)}, v{va}, s[{sO}:{sO+3}], 0 offen" + (f" offset:{16*x}" if x else ""))
        out.append(f"L_fin{tag}:")
        if stamp:
            for s in f"""s_waitcnt vmcnt(0)
    s_memrealtime s[42:43]
    s_load_dwordx4 s[48:51], s[0:1], 32
    s_getreg_b32 s52, hwreg(HW_REG_XCC_ID)
    s_getreg_b32 s53, hwreg(HW_REG_HW_ID)
    s_waitcnt lgkmcnt(0)
    s_mov_b64 exec, 1
    s_mul_i32 s45, s2, {NW}
    s_add_u32 s45, s45, s{sW}
    s_lshl_b32 s45, s45, 5
    v_mov_b32 v1, s45
    v_mov_b32 v4, s40
    v_mov_b32 v5, s46
    v_mov_b32 v6, s42
    v_mov_b32 v7, s52
    v_mov_b32 v8, s53
    v_mov_b32 v9, 0x12345678
    global_store_dwordx4 v1, v[4:7], s[50:51]
    global_store_dwordx2 v1, v[8:9], s[50:51] offset:16""".split("\n"):
                e(s)
    import copy
    if Dodd is None:
        main_body(D, "")
    else:
        e("s_bitcmp1_b32 s39, 0")
        e("s_cbranch_scc1 L_odd")
        H0 = copy.deepcopy(H.__dict__)
        main_body(D, "e")
        out.append("    s_endpgm")
        out.append("L_odd:")
        H.__dict__.update(H0)
        main_body(Dodd, "o")
    out.append("L_end:")
    out.append("    s_endpgm")
    acc = min(256, (nv + 3) // 4 * 4)
    out.append('.section .rodata,"a"')
    out.append(".p2align 6")
    out.append(f".amdhsa_kernel {NAME}")
    out.append(f"  .amdhsa_next_free_vgpr {nv}")
    out.append(f"  .amdhsa_next_free_sgpr 64")
    out.append(f"  .amdhsa_accum_offset {acc}")
    out.append("  .amdhsa_group_segment_fixed_size 0")
    out.append("  .amdhsa_kernarg_size 48")
    out.append("  .amdhsa_user_sgpr_count 2")
    out.append("  .amdhsa_user_sgpr_kernarg_segment_ptr 1")
    out.append("  .amdhsa_system_sgpr_workgroup_id_x 1")
    out.append(".end_amdhsa_kernel")
    assert nv <= 256
    return "\n".join(out) + "\n"

def il(s): return None if s is None else [int(x) for x in s.split(",") if x]
if __name__ == "__main__":
    ap = argparse.ArgumentParser()
    ap.add_argument("-o", default="/dev/stdout")
    ap.add_argument("--nw", type=int, default=4)
    ap.add_argument("--d", default="5")
    ap.add_argument("--dodd", default=None)
    ap.add_argument("--mode", default="online")
    ap.add_argument("--nbk", type=int, default=1)
    ap.add_argument("--nbv", type=int, default=1)
    ap.add_argument("--budget", type=int, default=10)
    ap.add_argument("--dtail", type=int, default=0)
    ap.add_argument("--ntail", type=int, default=0)
    ap.add_argument("--dhead", type=int, default=0)
    ap.add_argument("--nhead", type=int, default=0)
    ap.add_argument("--ldsmin", type=int, default=0)
    ap.add_argument("--flags", default="nt")
    ap.add_argument("--stamp", action="store_true")
    ap.add_argument("-v", action="store_true")
    ap.add_argument("--ubits", default=None)
    ap.add_argument("--wbits", default=None)
    ap.add_argument("--vord", default="0,2,1,3,4,6,5,7")
    a = ap.parse_args()
    open(a.o, "w").write(gen(a.nw, il(a.d), a.mode, a.nbk, a.nbv, a.budget, a.stamp, a.dtail, a.ntail, a.dhead, a.nhead,
                             a.flags, a.ldsmin, verbose=a.v, ubits=il(a.ubits), wbits=il(a.wbits), vord=il(a.vord), Dodd=il(a.dodd)))
```

```python
import re

TRANS = ("v_exp_f32", "v_rcp_f32", "v_log_f32", "v_rsq_f32", "v_sqrt_f32")

def regs_of(tok):
    tok = tok.strip().lstrip("-").strip("|")
    m = re.fullmatch(r"([vsa])(\d+)", tok)
    if m:
        return [m.group(1) + m.group(2)]
    m = re.fullmatch(r"([vsa])\[(\d+):(\d+)\]", tok)
    if m:
        return [m.group(1) + str(i) for i in range(int(m.group(2)), int(m.group(3)) + 1)]
    if tok in ("vcc", "vcc_lo", "vcc_hi"):
        return ["vcc"]
    if tok in ("exec", "exec_lo", "exec_hi"):
        return ["exec"]
    if tok == "m0":
        return ["m0"]
    return []

def parse(ins):
    ins = ins.split(";")[0].strip()
    parts = ins.split(None, 1)
    op = parts[0]
    ops = []
    mods = ""
    if len(parts) > 1:
        toks = [t.strip() for t in parts[1].split(",")]
        for i, t in enumerate(toks):
            if i == len(toks) - 1 or " " in t:
                sp = t.split(None, 1)
                ops.append(sp[0])
                if len(sp) > 1:
                    mods += " " + ",".join([sp[1]] + toks[i + 1:])
                    break
            else:
                ops.append(t)
    return op, ops, mods

class Info:
    pass

def classify(ins):
    op, ops, mods = parse(ins)
    I = Info()
    I.op = op
    I.kind = "other"
    I.rd, I.wr = [], []
    I.ab, I.c = [], []
    I.dpp = False
    I.lds = False
    I.data = []
    R = [regs_of(o) for o in ops]
    if op.startswith("v_mfma"):
        I.kind = "mfma"
        I.wr = R[0]; I.ab = R[1] + R[2]; I.c = R[3]; I.rd = I.ab + I.c
    elif op.startswith("v_permlane"):
        I.kind = "valu"; I.perm = True
        I.wr = R[0] + R[1]; I.rd = R[0] + R[1]
    elif op.startswith("v_"):
        I.kind = "valu"
        I.wr = R[0]
        I.rd = sum(R[1:], [])
        if "_dpp" in op or "row_" in mods or "quad_perm" in mods:
            I.dpp = True
            I.rd = I.rd + R[0]
        if op.startswith(("v_fmac", "v_mac", "v_writelane", "v_pk_fmac")):
            I.rd = I.rd + R[0]
        if op.startswith("v_cndmask") and len(ops) == 3:
            I.rd = I.rd + ["vcc"]
    elif op.startswith("buffer_load") or op.startswith("global_load"):
        I.kind = "vmem"
        if " lds" in mods or "_lds_" in op:
            I.lds = True
            I.rd = sum(R, []) + ["m0"]
        else:
            I.wr = R[0]; I.rd = sum(R[1:], [])
    elif op.startswith("buffer_store"):
        I.kind = "vmem"; I.rd = sum(R, [])
        if "x3" in op or "x4" in op: I.data = R[0]
    elif op.startswith("global_store"):
        I.kind = "vmem"; I.rd = sum(R, [])
        if "x3" in op or "x4" in op: I.data = R[1]
    elif op.startswith("ds_read"):
        I.kind = "ds"; I.wr = R[0]; I.rd = sum(R[1:], [])
    elif op.startswith("ds_"):
        I.kind = "ds"; I.rd = sum(R, [])
    elif op.startswith("s_"):
        I.kind = "salu"
        if op not in ("s_waitcnt", "s_nop", "s_barrier", "s_endpgm") and not op.startswith(("s_cmp", "s_cbranch", "s_branch")):
            I.wr = R[0] if R else []
            I.rd = sum(R[1:], [])
        else:
            I.rd = sum(R, [])
    return I

class Haz:
    def __init__(self):
        self.t = 0
        self.valu_w = {}
        self.trans_w = {}
        self.mfma_w = {}
        self.mfma_c = {}
        self.store_d = {}
        self.salu_w = {}
    def need(self, I):
        n = 0
        def req(tab, r, ws):
            nonlocal n
            if r in tab:
                t0 = tab[r][0] if isinstance(tab[r], tuple) else tab[r]
                have = self.t - t0 - 1
                n = max(n, ws - have)
        if I.kind == "mfma":
            for r in I.rd:
                req(self.valu_w, r, 2)
            req(self.valu_w, "exec", 4)
            for r in I.ab:
                req(self.mfma_w, r, 8)
            for r in I.c:
                if r in self.mfma_w and self.mfma_w[r][1] != tuple(I.c):
                    req(self.mfma_w, r, 6)
            if not I.c or tuple(I.c) != tuple(I.wr):
                for r in I.wr:
                    req(self.mfma_w, r, 8)
        elif I.kind == "valu":
            for r in I.rd + I.wr:
                req(self.mfma_w, r, 8)
            for r in I.wr:
                req(self.mfma_c, r, 3)
                req(self.store_d, r, 2)
            if I.dpp or I.op.startswith("v_permlane"):
                for r in I.rd:
                    req(self.valu_w, r, 2)
            if I.dpp:
                req(self.valu_w, "exec", 5)
            if I.op.startswith(("v_readfirstlane", "v_readlane")):
                for r in I.rd:
                    req(self.valu_w, r, 1)
            if not I.op.startswith(TRANS):
                for r in I.rd:
                    req(self.trans_w, r, 1)
            for r in I.rd:
                if r[0] == "s" or r == "vcc":
                    req(self.valu_w, r, 4 if I.op.startswith(("v_readlane", "v_writelane")) else 2)
        elif I.kind in ("vmem", "ds"):
            for r in I.rd + I.wr:
                req(self.mfma_w, r, 8)
            for r in I.rd:
                if r[0] == "s":
                    req(self.valu_w, r, 5)
            for r in I.wr:
                req(self.store_d, r, 1)
            if I.lds:
                req(self.salu_w, "m0", 1)
        elif I.kind == "salu":
            for r in I.rd:
                req(self.valu_w, r, 2)
        return n
    def emit(self, ins, out):
        s = ins.strip()
        if not s or s.startswith(";") or s.endswith(":"):
            out.append(ins)
            return
        I = classify(s)
        n = self.need(I)
        while n > 0:
            k = min(n, 16)
            out.append(f"    s_nop {k-1}")
            self.t += k
            n -= k
        out.append("    " + s)
        if I.op == "s_nop":
            self.t += int(s.split()[1])
        if I.kind == "valu":
            for r in I.wr:
                self.valu_w[r] = self.t
                self.trans_w.pop(r, None)
                self.mfma_w.pop(r, None)
                if I.op.startswith(TRANS):
                    self.trans_w[r] = self.t
        elif I.kind == "mfma":
            for r in I.wr:
                self.mfma_w[r] = (self.t, tuple(I.wr))
                self.valu_w.pop(r, None)
            for r in I.c:
                self.mfma_c[r] = self.t
        elif I.kind == "salu":
            for r in I.wr:
                self.salu_w[r] = self.t
                self.valu_w.pop(r, None)
        if I.data:
            for r in I.data:
                self.store_d[r] = self.t
        self.t += 1

def roll(blocks, period, scnt, label):
    out = []
    p = 0
    nl = 0
    n = len(blocks)
    info = []
    while p < n:
        c = 1
        while p + (c + 1) * period <= n and blocks[p + c * period: p + (c + 1) * period] == blocks[p: p + period]:
            c += 1
        if c >= 2:
            out.append(f"    s_mov_b32 s{scnt}, {c}")
            out.append(f"{label}{nl}:")
            for b in blocks[p:p + period]:
                out += b
            out.append(f"    s_sub_u32 s{scnt}, s{scnt}, 1")
            out.append(f"    s_cmp_lg_u32 s{scnt}, 0")
            out.append(f"    s_cbranch_scc1 {label}{nl}")
            info.append((p, c))
            nl += 1
            p += c * period
        else:
            out += blocks[p]
            p += 1
    return out, info

def segments(blocks, period, align=None):
    segs = []
    p = 0
    n = len(blocks)
    while p < n:
        c = 1
        while (align is None or p % period == align) and p + (c + 1) * period <= n and blocks[p + c * period: p + (c + 1) * period] == blocks[p: p + period]:
            c += 1
        if c >= 2:
            segs.append(("l", p, c))
            p += c * period
        else:
            segs.append(("s", p, 1))
            p += 1
    return segs
```

```python
import sys, argparse, struct, math
from asmlib import Haz, roll, segments

HEADER = """; Kernarg layout for this problem (48 bytes, ptrs only, base s[0:1]):
"""
NAME = "standalone__mha_softmax__sampling_kernel"

def r4(x): return f"v[{x}:{x+3}]"

class Item:
    def __init__(self, key, prio, ins, loads=(), after=(), reads=()):
        self.key, self.prio, self.ins = key, prio, ins
        self.loads, self.after, self.reads = list(loads), list(after), list(reads)

def gen(NW=4, D=5, mode="online", NBK=1, NBV=1, budget=10, stamp=False, dtail=0, ntail=0, dhead=0, nhead=0,
        flags="nt", ldsmin=0, qpos=2, verbose=False, ubits=None, wbits=None, vord=(0, 2, 1, 3, 4, 6, 5, 7), Dodd=None, ctl=None, tab=None):
    phase = mode == "phase"
    ntiles = 128 // NW
    out = []
    H = Haz()
    cur = out
    def e(s):
        H.emit(s, cur)
    if phase:
        wstride = ntiles * 1024
        mlbase = NW * wstride
    else:
        wstride = 4224
        mlbase = NW * wstride
    lds_bytes = max(mlbase + NW * 64 + 64, ldsmin)
    out.append(HEADER.rstrip())
    out.append(f"; @launch grid=(256,1,1) block=({(NW + (1 if ctl and ctl['cw'] else 0))*64},1,1) lds={lds_bytes}")
    out.append('.amdgcn_target "amdgcn-amd-amdhsa--gfx950"')
    out.append(".text")
    out.append(f".globl {NAME}")
    out.append(".p2align 8")
    out.append(f".type {NAME},@function")
    out.append(f"{NAME}:")
    sK, sV, sQ, sO = 12, 16, 20, 24
    sW, sT, sCnt, sC, sPlo, sPhi = 28, 29, 30, 31, 32, 33
    sU, sA0 = 34, 38
    lgw = NW.bit_length() - 1
    if ubits is None: ubits = [11, 12]
    if wbits is None: wbits = [b for b in range(11, 13 + lgw) if b not in ubits]
    assert sorted(ubits + wbits) == list(range(11, 13 + lgw)) and len(ubits) == 2
    uoff = [((u & 1) << ubits[0]) | ((u >> 1) << ubits[1]) for u in range(4)]
    ubase = {}
    for u in range(4):
        b = uoff[u] & ~2048
        if b not in ubase: ubase[b] = sU + len(ubase)
    def usg(u): return ubase[uoff[u] & ~2048], uoff[u] & 2048
    def set_u():
        for b, sg in ubase.items():
            e(f"s_add_u32 s{sg}, s{sA0}, {b}" if b else f"s_mov_b32 s{sg}, s{sA0}")
    vLane, vOffK, vOffV, vOffQ = 1, 2, 3, 4
    vM, vMc, vL, vX, vY, vAl, vZ = 5, 6, 7, 8, 9, 10, 11
    vM0, vM1, vLw, vLr = 12, 13, 14, 15
    vT = 16
    vB = 24
    vPa = 28
    vEa, vEm = 30, 31
    vQ = 32
    vS = 40
    vO = 56
    vA = 88
    vKb = 120
    vVb = vKb + NBK * 32
    nv = vVb + NBV * 32
    if phase:
        assert NBK == NBV
        vVb = vKb
        nv = vKb + NBK * 32
    assert nv <= 512

    e("s_cmp_ge_u32 s2, 256")
    e("s_cbranch_scc1 L_end")
    if stamp:
        e("s_memrealtime s[40:41]")
    e("s_load_dwordx4 s[4:7], s[0:1], 0")
    e("s_load_dwordx4 s[8:11], s[0:1], 16")
    if Dodd is not None:
        e("s_getreg_b32 s39, hwreg(HW_REG_XCC_ID)")
    sDb, sPh, sBase, sLv, sWo, sE = 56, 60, 61, 62, 63, 44
    vAt = vOffQ
    if ctl:
        e(f"s_load_dwordx2 s[{sDb}:{sDb+1}], s[0:1], {40 if ctl['ws'] else 32}")
    if tab:
        e(f"s_load_dwordx2 s[{sDb}:{sDb+1}], s[0:1], {40 if tab['ws'] else 32}")
    e(f"v_readfirstlane_b32 s{sW}, v0")
    e(f"v_and_b32 v{vLane}, 63, v0")
    e(f"v_bfe_u32 v{vX}, v{vLane}, 2, 2")
    e(f"v_lshlrev_b32 v{vX}, 8, v{vX}")
    e(f"v_bfe_u32 v{vY}, v{vLane}, 1, 1")
    e(f"v_lshl_add_u32 v{vX}, v{vY}, 10, v{vX}")
    e(f"v_and_b32 v{vY}, 1, v{vLane}")
    e(f"v_lshl_add_u32 v{vX}, v{vY}, 6, v{vX}")
    e(f"v_lshrrev_b32 v{vZ}, 4, v{vLane}")
    e(f"v_lshl_add_u32 v{vOffK}, v{vZ}, 4, v{vX}")
    e(f"v_lshlrev_b32 v{vOffV}, 4, v{vLane}")
    e(f"v_and_b32 v{vX}, 7, v{vLane}")
    e(f"v_lshlrev_b32 v{vX}, 8, v{vX}")
    e(f"v_bfe_u32 v{vY}, v{vLane}, 3, 1")
    e(f"v_lshl_add_u32 v{vX}, v{vY}, 6, v{vX}")
    e(f"v_lshl_add_u32 v{vOffQ}, v{vZ}, 4, v{vX}")
    e(f"s_lshr_b32 s{sW}, s{sW}, 6")
    if ctl and ctl["cw"]:
        e(f"s_cmp_eq_u32 s{sW}, {NW}")
        e("s_cbranch_scc1 L_ctl")
    e(f"s_lshl_b32 s{sT}, s2, 20")
    e(f"s_mov_b32 s{sK+2}, 0x100000")
    e(f"s_mov_b32 s{sK+3}, 0x20000")
    e(f"s_mov_b32 s{sV+2}, 0x100000")
    e(f"s_mov_b32 s{sV+3}, 0x20000")
    e(f"s_mov_b32 s{sQ+2}, 2048")
    e(f"s_mov_b32 s{sQ+3}, 0x20000")
    e(f"s_mov_b32 s{sO+2}, 2048")
    e(f"s_mov_b32 s{sO+3}, 0x20000")
    if wbits == list(range(wbits[0], wbits[0] + lgw)) if wbits else True:
        e(f"s_lshl_b32 s{sA0}, s{sW}, {wbits[0] if wbits else 0}")
    else:
        e(f"s_mov_b32 s{sA0}, 0")
        for i, b in enumerate(wbits):
            e(f"s_bfe_u32 s3, s{sW}, {(1 << 16) | i}")
            e(f"s_lshl_b32 s3, s3, {b}")
            e(f"s_or_b32 s{sA0}, s{sA0}, s3")
    set_u()
    e(f"s_lshl_b32 s3, s2, 11")
    e("s_waitcnt lgkmcnt(0)")
    e(f"s_add_u32 s{sK}, s6, s{sT}")
    e(f"s_addc_u32 s{sK+1}, s7, 0")
    step = NW * 8192

    def main_body(Dpat, tag):
        nonlocal cur
        VORD = list(vord)
        loads = []
        if phase:
            for t in range(ntiles):
                loads += [("K", t, x) for x in range(8)]
            for t in range(ntiles):
                loads += [("V", t, x) for x in range(8)]
        else:
            for t in range(ntiles):
                loads += [("K", t, x) for x in range(8)] + [("V", t, x) for x in range(8)]
        idx = {l: n for n, l in enumerate(loads)}
        NL = len(loads)
        def kreg(t, x): return vKb + (t % NBK) * 32 + x * 4
        def vreg(t, row):
            if phase:
                return vVb + ((t + ntiles) % NBV) * 32 + VORD.index(row) * 4
            return vVb + (t % NBV) * 32 + VORD.index(row) * 4
        def dest(l):
            k, t, x = l
            return kreg(t, x) if k == "K" else vreg(t, VORD[x])
        def load_text(l):
            k, t, x = l
            if k == "K":
                u, hf = x >> 1, x & 1
                so, off = usg(u)
                off += hf * 128
                return f"buffer_load_dwordx4 {r4(dest(l))}, v{vOffK}, s[{sK}:{sK+3}], s{so} offen" + (f" offset:{off}" if off else "") + f" {flags}"
            row = VORD[x]
            so, off = usg(row >> 1)
            off += (row & 1) * 1024
            return f"buffer_load_dwordx4 {r4(dest(l))}, v{vOffV}, s[{sV}:{sV+3}], s{so} offen" + (f" offset:{off}" if off else "") + f" {flags}"

        items = []
        def add(*a, **k):
            items.append(Item(*a, **k))
        def qk_items(t, tset, free_after):
            for u in range(4):
                add(("QK", t, u), (t, 0, u), [
                    f"v_mfma_f32_16x16x32_bf16 {r4(vS+4*u)}, {r4(kreg(t,2*u))}, {r4(vQ)}, 0",
                    f"v_mfma_f32_16x16x32_bf16 {r4(vS+4*u)}, {r4(kreg(t,2*u+1))}, {r4(vQ+4)}, {r4(vS+4*u)}"],
                    loads=[("K", t, 2*u), ("K", t, 2*u+1), "Q"], after=[("DP", t-1, u >> 1)],
                    reads=[("K", t, 2*u), ("K", t, 2*u+1)])
            for p in range(2):
                ins = []
                for u in (2*p, 2*p+1):
                    ins.append(f"v_add_f32_dpp v{tset+u}, v{vS+4*u+1}, v{vS+4*u} row_ror:8 row_mask:0xf bank_mask:0x3")
                for u in (2*p, 2*p+1):
                    ins.append(f"v_add_f32_dpp v{tset+u}, v{vS+4*u+2}, v{vS+4*u+3} row_ror:8 row_mask:0xf bank_mask:0xc")
                add(("DP", t, p), (t, 1, p), ins, after=[("QK", t, 2*p), ("QK", t, 2*p+1)] + free_after)
        def red_max():
            return [f"v_mov_b32 v{vY}, v{vX}",
                    f"v_permlane16_swap_b32 v{vX}, v{vY}",
                    f"v_max_f32 v{vX}, v{vX}, v{vY}",
                    f"v_mov_b32 v{vY}, v{vX}",
                    f"v_permlane32_swap_b32 v{vX}, v{vY}",
                    f"v_max_f32 v{vX}, v{vX}, v{vY}",
                    f"v_max_f32_dpp v{vM}, v{vX}, v{vX} row_ror:8 row_mask:0xf bank_mask:0xf"]
        def exp_ins(ts):
            return [f"v_fma_f32 v{ts+u}, v{ts+u}, s{sC}, -v{vMc}" for u in range(4)] + \
                   [f"v_exp_f32 v{ts+u}, v{ts+u}" for u in range(4)]
        def cvt_ins(ts):
            return [f"v_cvt_pk_bf16_f32 v{vPa}, v{ts}, v{ts+1}",
                    f"v_cvt_pk_bf16_f32 v{vPa+1}, v{ts+2}, v{ts+3}",
                    f"v_add_f32 v{vX}, v{ts}, v{ts+1}",
                    f"v_add_f32 v{vY}, v{ts+2}, v{ts+3}",
                    f"v_and_b32 v{vB}, v{vPa}, v{vM0}",
                    f"v_and_b32 v{vB+1}, v{vPa+1}, v{vM0}",
                    f"v_and_b32 v{vB+2}, v{vPa}, v{vM1}",
                    f"v_and_b32 v{vB+3}, v{vPa+1}, v{vM1}",
                    f"v_add_f32 v{vX}, v{vX}, v{vY}"]
        def pv_items(t, tp, extra):
            pairs = [(0, 2, 0), (1, 3, 2), (4, 6, 1), (5, 7, 3)]
            for p, (a, b, slot) in enumerate(pairs):
                ins = []
                for j in range(8):
                    sel = sPhi if j & 1 else sPlo
                    ins.append(f"v_perm_b32 v{vA+4*j+slot}, v{vreg(t,b)+(j>>1)}, v{vreg(t,a)+(j>>1)}, s{sel}")
                lds_ = [("V", t, VORD.index(a)), ("V", t, VORD.index(b))]
                add(("PM", t, p), (tp, 5, p), ins, loads=lds_, after=[("PV", t-1, 1)], reads=lds_)
            for hfl in range(2):
                ins = [f"v_mfma_f32_16x16x32_bf16 {r4(vO+4*j)}, {r4(vA+4*j)}, {r4(vB)}, {r4(vO+4*j)}" for j in range(4*hfl, 4*hfl+4)]
                add(("PV", t, hfl), (tp, 6, hfl), ins, after=[("PM", t, p) for p in range(4)] + [("CV", t)] + extra(hfl) + ([("PV", t, 0)] if hfl else []))
        if not phase:
            for t in range(ntiles):
                qk_items(t, vT, [("CV", t-1)])
                add(("MX", t), (t, 2, 0),
                    [f"v_max3_f32 v{vX}, v{vT}, v{vT+1}, v{vM}", f"v_max3_f32 v{vX}, v{vT+2}, v{vT+3}, v{vX}"] + red_max() +
                    [f"v_mul_f32 v{vZ}, s{sC}, v{vM}", f"v_sub_f32 v{vAl}, v{vMc}, v{vZ}", f"v_mov_b32 v{vMc}, v{vZ}", f"v_exp_f32 v{vAl}, v{vAl}"],
                    after=[("DP", t, 0), ("DP", t, 1), ("CV", t-1)] + [("RS", t-1, k) for k in range(4)])
                add(("EX", t), (t, 3, 0), exp_ins(vT), after=[("MX", t)])
                add(("CV", t), (t, 3, 1), cvt_ins(vT) + [f"v_fma_f32 v{vL}, v{vL}, v{vAl}, v{vX}"], after=[("EX", t), ("PV", t-1, 1)])
                for k in range(4):
                    add(("RS", t, k), (t, 4, k), [f"v_mul_f32 v{vO+8*k+i}, v{vO+8*k+i}, v{vAl}" for i in range(8)],
                        after=[("MX", t), ("PV", t-1, 1)])
                pv_items(t, t, lambda hfl: [("RS", t, 2*hfl), ("RS", t, 2*hfl+1)])
        else:
            for t in range(ntiles):
                qk_items(t, vT, [("ST", t-1)])
                add(("ST", t), (t, 2, 0),
                    [f"ds_write_b128 v{vLw}, {r4(vT)}",
                     f"v_max3_f32 v{vM}, v{vT}, v{vT+1}, v{vM}", f"v_max3_f32 v{vM}, v{vT+2}, v{vT+3}, v{vM}",
                     f"v_add_u32 v{vLw}, 1024, v{vLw}"],
                    after=[("DP", t, 0), ("DP", t, 1)])
            add(("RD", 0), (ntiles - 1, 3, 0), [f"ds_read_b128 {r4(vT+4)}, v{vLr}", f"v_add_u32 v{vLr}, 1024, v{vLr}"], after=[("ST", ntiles-1)])
            add(("MX",), (ntiles - 1, 3, 1), [f"v_mov_b32 v{vX}, v{vM}"] + red_max() + [f"v_mul_f32 v{vMc}, s{sC}, v{vM}"], after=[("ST", ntiles-1)])
            for t in range(ntiles):
                tp = ntiles + t
                ins = ["s_waitcnt lgkmcnt(0)"] + [f"v_fma_f32 v{vT+u}, v{vT+4+u}, s{sC}, -v{vMc}" for u in range(4)]
                if t + 1 < ntiles:
                    ins += [f"ds_read_b128 {r4(vT+4)}, v{vLr}", f"v_add_u32 v{vLr}, 1024, v{vLr}"]
                ins += [f"v_exp_f32 v{vT+u}, v{vT+u}" for u in range(4)]
                add(("EX", t), (tp, 3, 0), ins, after=[("MX",), ("RD", 0), ("CV", t-1)])
                add(("CV", t), (tp, 3, 1), cvt_ins(vT) + [f"v_add_f32 v{vL}, v{vL}, v{vX}"], after=[("EX", t), ("PV", t-1, 1)])
                pv_items(t, tp, lambda hfl: [])
        keys = {it.key for it in items}
        for it in items:
            it.after = [a for a in it.after if a in keys]
        items.sort(key=lambda it: it.prio)
        pending_reads = {}
        for it in items:
            for r in it.reads:
                pending_reads.setdefault(r, set()).add(it.key)

        c = (128 ** -0.5) * math.log2(math.e)
        cbits = struct.unpack("<I", struct.pack("<f", c))[0]
        setup = [f"s_add_u32 s{sO}, s10, s3", f"s_addc_u32 s{sO+1}, s11, 0",
                 f"s_mov_b32 s{sC}, 0x{cbits:08x}", f"s_mov_b32 s{sPlo}, 0x05040100", f"s_mov_b32 s{sPhi}, 0x07060302",
                 f"v_mov_b32 v{vM}, 0xff800000", f"v_mov_b32 v{vMc}, 0xff800000", f"v_mov_b32 v{vL}, 0",
                 f"v_bfe_i32 v{vM1}, v{vLane}, 3, 1", f"v_not_b32 v{vM0}, v{vM1}"]
        setup += [f"v_mov_b32 v{vO+i}, 0" for i in range(32)]
        setup += [f"s_mul_i32 s{sT}, s{sW}, {wstride}"]
        if phase:
            setup += [f"v_add_u32 v{vLw}, s{sT}, v{vOffV}", f"v_add_u32 v{vLr}, s{sT}, v{vOffV}"]
        if NW == 1:
            setup += [f"v_and_b32 v{vX}, 7, v{vLane}", f"v_lshlrev_b32 v{vEa}, 8, v{vX}",
                      f"v_lshrrev_b32 v{vY}, 3, v{vLane}", f"v_lshl_add_u32 v{vEa}, v{vY}, 5, v{vEa}"]
        else:
          setup += [f"v_and_b32 v{vX}, 7, v{vLane}", f"v_mul_u32_u24 v{vEa}, 528, v{vX}",
                  f"v_lshrrev_b32 v{vY}, 3, v{vLane}", f"v_lshl_add_u32 v{vEa}, v{vY}, 6, v{vEa}",
                  f"v_add_u32 v{vEa}, s{sT}, v{vEa}",
                  f"s_lshl_b32 s{sT}, s{sW}, 6", f"s_add_u32 s{sT}, s{sT}, {mlbase}",
                  f"v_lshlrev_b32 v{vEm}, 3, v{vX}", f"v_add_u32 v{vEm}, s{sT}, v{vEm}"]

        if ctl:
            CK, SH, NG = ctl["ck"], ctl["shards"], ctl["n"]
            lgck = CK.bit_length() - 1
            csetup = []
            csetup += [f"s_mov_b32 s{sDb+2}, {0x400000 if ctl['ws'] else 256}", f"s_mov_b32 s{sDb+3}, 0x20000",
                      f"s_bfe_u32 s{sPh}, s2, {(lgck << 16) | 3}",
                      f"s_bfe_u32 s{sWo}, s2, {((SH.bit_length() - 1) << 16) | (3 + lgck)}" if SH > 1 else f"s_mov_b32 s{sWo}, 0",
                      f"s_mul_i32 s{sE}, s{sW}, {SH}" if ctl["perwave"] else f"s_mov_b32 s{sE}, 0",
                      f"s_add_u32 s{sWo}, s{sWo}, s{sE}"]
            if ctl["shared"]:
                csetup += [f"s_sub_u32 s{sE}, {CK-1}, s{sPh}", f"s_mul_i32 s{sBase}, s{sE}, {NG}"]
                NSTEP = NG * CK
            else:
                csetup += [f"s_lshl_b32 s{sWo}, s{sWo}, {lgck}", f"s_add_u32 s{sWo}, s{sWo}, s{sPh}", f"s_mov_b32 s{sBase}, 0"]
                NSTEP = NG
            csetup += [f"s_mul_i32 s{sWo}, s{sWo}, {ctl['stride']}"]
            if ctl["ws"]:
                keep = ((SH - 1) << (3 + lgck)) | (0 if ctl["shared"] else (CK - 1) << 3)
                csetup += [f"s_add_u32 s{sWo}, s{sWo}, 0x200000", f"s_and_b32 s{sE}, s2, {0xff & ~keep}"]
                if not ctl["perwave"]:
                    csetup += [f"s_or_b32 s{sE}, s{sE}, s{sW}"]
                csetup += [f"s_cbranch_scc1 L_noclr{tag}", f"v_mov_b32 v{vAt}, 0", "s_mov_b64 exec, 1",
                          f"buffer_store_dword v{vAt}, off, s[{sDb}:{sDb+3}], s{sWo} sc0 sc1", "s_mov_b64 exec, -1", f"L_noclr{tag}:"]
            csetup += [
                      f"s_cmp_eq_u32 s{sPh}, 0", f"s_cselect_b32 s{sE}, {NSTEP}, 0", f"s_sub_u32 s{sBase}, s{sBase}, s{sE}",
                      f"s_add_u32 s{sE}, s{sBase}, {NG // 2}", f"v_mov_b32 v{vAt}, s{sE}",
                      f"s_mov_b32 s{sLv}, {ctl['neutral']}"]
            if ctl["cw"]:
                ctl["csetup"], ctl["nstep"] = csetup, NSTEP
                setup += [f"s_bfe_u32 s{sPh}, s2, {(lgck << 16) | 3}", f"s_mov_b32 s{sLv}, {ctl['neutral']}",
                          f"v_mov_b32 v{vAt}, {ctl['neutral']}", f"v_mov_b32 v{vAl}, {mlbase + NW * 64}",
                          f"ds_write_b32 v{vAl}, v{vAt}"]
                assert phase
            else:
                setup += csetup
            Dmax = max(max(p) for p in ctl["levels"])
            Dmin = min(min(p) for p in ctl["levels"])
        if tab:
            if tab["ws"]:
                assert NW == 2
                setup += [f"s_mov_b32 s{sDb+2}, 0x400000", f"s_mov_b32 s{sDb+3}, 0x20000",
                      f"s_getreg_b32 s{sE}, hwreg(HW_REG_XCC_ID, 0, 3)", f"s_mul_i32 s{sE}, s{sE}, {tab['stride']}",
                      f"s_add_u32 s{sE}, s{sE}, 0x200000",
                      f"v_add_u32 v{vAl}, s{sE}, v{vLane}",
                      f"s_lshr_b32 s{sWo}, s2, 3", f"s_lshl1_add_u32 s{sWo}, s{sWo}, s{sW}", f"s_add_u32 s{sWo}, s{sWo}, s{sE}"]
            else:
                setup += [f"s_mov_b32 s{sDb+2}, 256", f"s_mov_b32 s{sDb+3}, 0x20000",
                      f"s_getreg_b32 s{sWo}, hwreg(HW_REG_HW_ID, 8, 4)", f"s_getreg_b32 s{sE}, hwreg(HW_REG_HW_ID, 13, 2)",
                      f"s_lshl4_add_u32 s{sWo}, s{sE}, s{sWo}",
                      f"s_lshl_b32 s{sE}, s{sW}, 6", f"s_add_u32 s{sWo}, s{sWo}, s{sE}",
                      f"v_add_u32 v{vAl}, s{sE}, v{vLane}"]
            setup += [
                      f"s_getreg_b32 s{sBase}, hwreg(HW_REG_XCC_ID, 0, 1)",
                      f"s_cmp_eq_u32 s{sBase}, 0", f"s_cselect_b32 s{sBase}, {tab['bias']}, 0",
                      f"s_mov_b32 s{sPh}, 1", f"s_add_u32 s{sLv}, s{sBase}, {tab['neutral']}"]
            Dmax = max(max(p) for p in tab["levels"])
            Dmin = min(min(p) for p in tab["levels"])
            tper = (8 if phase else 16) * max(NBK, NBV)
            tcons = (tab["align"] - 1) % tper
            tpub = (tcons - Dmax - 1) % tper
        def depth(n):
            if ntail and n >= NL - ntail: return dtail
            if nhead and n < nhead: return dhead
            return Dpat[n % len(Dpat)]
        issued = []
        landed = set()
        done = set()
        def wait_for(tag):
            if tag in landed:
                return
            p = issued.index(tag)
            cnt = len([x for x in issued[p + 1:] if x[0] != "TS"])
            assert cnt <= 63
            e(f"s_waitcnt vmcnt({cnt})")
            landed.update(issued[:p + 1])
        def ready(it):
            return all(l in landed for l in it.loads) and all(a in done for a in it.after)
        def run(it):
            for s in it.ins:
                e(s)
            done.add(it.key)
            items.remove(it)
            for r in it.reads:
                pending_reads[r].discard(it.key)
        owner = {}
        blocks = []
        setup_done = False
        tpend = None
        for n, l in enumerate(loads):
            cur = []
            blocks.append(cur)
            if ctl or tab:
                if n - Dmin >= 0:
                    if not setup_done:
                        for s in setup: e(s)
                        setup_done = True
                    cn = [str(len(issued) - 1 - issued.index(loads[n - dd])) if n - dd >= 0 else "-" for dd in range(Dmin, Dmax + 1)]
                    e("WAIT " + " ".join(cn))
                    if n - Dmax >= 0:
                        nl_ = [x for x in issued if x[0] != "TS"]
                        landed.update(nl_[:len(nl_) - int(cn[-1])])
                    if stamp and n == Dpat[0]:
                        e("s_memrealtime s[46:47]")
                        e("s_waitcnt lgkmcnt(0)")
            elif n - depth(n) >= 0:
                if not setup_done:
                    for s in setup: e(s)
                    setup_done = True
                    if stamp:
                        wait_for(loads[n - depth(n)])
                        e("s_memrealtime s[46:47]")
                        e("s_waitcnt lgkmcnt(0)")
                wait_for(loads[n - depth(n)])
            d = dest(l)
            if d in owner:
                prev = owner[d]
                while pending_reads.get(prev):
                    cand = [it for it in items[:64] if ready(it)]
                    assert cand, f"slot {n}: buffer of {prev} still unread and nothing is ready"
                    if verbose: print(f"slot {n}: forced {cand[0].key}", file=sys.stderr)
                    run(cand[0])
            owner[d] = l
            if l[0] == "V" and l == loads[idx[('V', 0, 0)]] and n < 64 and False:
                pass
            e(load_text(l))
            issued.append(l)
            if n == 0:
                e(f"s_add_u32 s{sQ}, s4, s3")
                e(f"s_addc_u32 s{sQ+1}, s5, 0")
                e(f"s_add_u32 s{sV}, s8, s{sT}")
                e(f"s_addc_u32 s{sV+1}, s9, 0")
            if n == qpos - 1:
                e(f"buffer_load_dwordx4 {r4(vQ)}, v{vOffQ}, s[{sQ}:{sQ+3}], 0 offen")
                issued.append("Q0")
                e(f"buffer_load_dwordx4 {r4(vQ+4)}, v{vOffQ}, s[{sQ}:{sQ+3}], 0 offen offset:128")
                issued.append("Q")
            last_of_tile = (l[2] == 7) and (phase or l[0] == "V")
            if last_of_tile and n + 1 < NL:
                if phase and l[0] == "K" and l[1] == ntiles - 1:
                    set_u()
                else:
                    for sg in ubase.values():
                        e(f"s_add_u32 s{sg}, s{sg}, {step}")
            used = 0
            if tab and setup_done and n % tper == tcons and tpend:
                assert tpend in landed
                tpend = None
                for s_ in [f"s_sub_u32 s{sE}, s{sPh}, 1",
                           f"v_cmp_le_u32 s[64:65], s{sPh}, v{vAt}", f"v_cmp_lt_u32 s[66:67], s{sPh}, v{vAt}", f"v_cmp_le_u32 s[68:69], s{sE}, v{vAt}",
                           f"s_bcnt1_i32_b64 s{sLv}, s[64:65]", f"s_bcnt1_i32_b64 s{sE}, s[66:67]", f"s_add_u32 s{sLv}, s{sLv}, s{sBase}",
                           f"s_add_u32 s{sLv}, s{sLv}, s{sE}", f"s_bcnt1_i32_b64 s{sE}, s[68:69]", f"s_add_u32 s{sLv}, s{sLv}, s{sE}"]:
                    e(s_)
                used += 5
            if tab and setup_done and n % tper == tpub and n + tper < NL:
                e(f"s_add_u32 s{sPh}, s{sPh}, 1")
                for o_ in tab["ops"]:
                    if o_ == "s":
                        for s_ in [f"v_mov_b32 v{vZ}, s{sPh}", "s_mov_b64 exec, 1",
                                   f"buffer_store_byte v{vZ}, off, s[{sDb}:{sDb+3}], s{sWo} {tab['sflags']}", "s_mov_b64 exec, -1"]:
                            e(s_)
                        issued.append(("TS", n))
                    else:
                        e(f"buffer_load_ubyte v{vAt}, v{vAl}, s[{sDb}:{sDb+3}], 0 offen {tab['lflags']}")
                        issued.append(("TL", n))
                        if n > tper or not tab["ws"]:
                            tpend = ("TL", n)
                used += 3
            while setup_done:
                cand = [it for it in items[:64] if ready(it) and (used == 0 or used + len(it.ins) <= budget)]
                if not cand:
                    break
                used += len(cand[0].ins)
                run(cand[0])
                if used >= budget:
                    break
        period = (8 if phase else 16) * max(NBK, NBV)
        if ctl or tab:
            def fix(n, pat):
                r = []
                for ln in blocks[n]:
                    if ln.strip().startswith("WAIT"):
                        c_ = ln.split()[1 + pat[n % len(pat)] - Dmin]
                        ln = "    s_nop 0" if c_ == "-" else f"    s_waitcnt vmcnt({c_})"
                    r.append(ln)
                return r
            body, info = [], []
            assert Dmax <= period
            for kind, p0, cnt in segments(blocks, period, tab["align"] if tab else None):
                if kind == "s":
                    body += fix(p0, [depth(p0)])
                    continue
                info.append((p0, cnt))
                X = f"{tag}_{p0}"
                B = lambda t: body.append(t if t.endswith(":") else "    " + t)
                B(f"s_mov_b32 s{sCnt}, {cnt}")
                B(f"L_head{X}:")
                if tab:
                    nlv = len(tab["levels"])
                    def tree(lo, hi):
                        if hi - lo == 1:
                            pat = tab["levels"][lo]
                            assert period % len(pat) == 0
                            for n in range(p0, p0 + period):
                                body.extend(fix(n, pat))
                            B(f"s_sub_u32 s{sCnt}, s{sCnt}, 1")
                            B(f"s_cmp_lg_u32 s{sCnt}, 0")
                            B(f"s_cbranch_scc1 L_head{X}")
                            if hi != nlv:
                                B(f"s_branch L_exit{X}")
                            return
                        mid = (lo + hi) // 2
                        B(f"s_cmp_ge_u32 s{sLv}, {tab['th'][mid - 1]}")
                        B(f"s_cbranch_scc1 L_t{X}_{mid}_{hi}")
                        tree(lo, mid)
                        B(f"L_t{X}_{mid}_{hi}:")
                        tree(mid, hi)
                    tree(0, nlv)
                    B(f"L_exit{X}:")
                    continue
                B(f"s_add_u32 s{sPh}, s{sPh}, 1")
                B(f"s_and_b32 s{sE}, s{sPh}, {CK-1}")
                if ctl["cw"]:
                    ctl["iters"] = ctl.get("iters", 0) + cnt
                    B(f"s_cbranch_scc1 L_noat{X}")
                    B("s_barrier")
                    B(f"L_noat{X}:")
                    B("s_waitcnt lgkmcnt(0)")
                    B(f"v_readfirstlane_b32 s{sLv}, v{vAt}")
                    B("s_nop 1")
                else:
                    B(f"s_cbranch_scc1 L_noat{X}")
                    B(f"v_mov_b32 v{vAt}, 1")
                    B("s_mov_b64 exec, 1")
                    B(f"buffer_atomic_add v{vAt}, off, s[{sDb}:{sDb+3}], s{sWo} {ctl['aflags']}")
                    B("s_mov_b64 exec, -1")
                    B(f"s_branch L_disp{X}")
                    B(f"L_noat{X}:")
                    B(f"s_cmp_eq_u32 s{sE}, 1")
                    B(f"s_cbranch_scc0 L_disp{X}")
                    B(f"v_readfirstlane_b32 s{sE}, v{vAt}")
                    B(f"s_mov_b32 s{sLv}, 0")
                    B("s_nop 1")
                    B(f"s_sub_u32 s{sE}, s{sE}, s{sBase}")
                    B(f"s_add_u32 s{sBase}, s{sBase}, {NSTEP}")
                    for th in ctl["th"]:
                        B(f"s_cmp_ge_i32 s{sE}, {th}")
                        B(f"s_addc_u32 s{sLv}, s{sLv}, 0")
                B(f"L_disp{X}:")
                nlv = len(ctl["levels"])
                order = [ctl["neutral"]] + [i for i in range(nlv) if i != ctl["neutral"]]
                for i in order[1:]:
                    B(f"s_cmp_eq_u32 s{sLv}, {i}")
                    B(f"s_cbranch_scc1 L_body{X}_{i}")
                for i in order:
                    B(f"L_body{X}_{i}:")
                    pat = ctl["levels"][i]
                    assert period % len(pat) == 0
                    for n in range(p0, p0 + period):
                        body += fix(n, pat)
                        if ctl["cw"] and n == p0 + period - 3:
                            B(f"ds_read_b32 v{vAt}, v{vAl}")
                    B(f"s_sub_u32 s{sCnt}, s{sCnt}, 1")
                    B(f"s_cmp_lg_u32 s{sCnt}, 0")
                    B(f"s_cbranch_scc1 L_head{X}")
                    if i != order[-1]:
                        B(f"s_branch L_exit{X}")
                B(f"L_exit{X}:")
        else:
            body, info = roll(blocks, period, sCnt, f"L_loop{tag}_")
        if verbose: print("loops (first slot, count):", info, "of", NL, "slots; period", period, file=sys.stderr)
        out.extend(body)
        cur = out
        while items:
            cand = [it for it in items if ready(it)]
            if cand:
                run(cand[0])
            else:
                nxt = next(t for t in issued if t not in landed)
                best = None
                for it in items:
                    if all(a in done for a in it.after):
                        p = max(issued.index(x) for x in it.loads)
                        best = p if best is None else min(best, p)
                assert best is not None
                wait_for(issued[best])

        e(f"v_mov_b32 v{vY}, v{vL}")
        e(f"v_permlane16_swap_b32 v{vL}, v{vY}")
        e(f"v_add_f32 v{vL}, v{vL}, v{vY}")
        e(f"v_mov_b32 v{vY}, v{vL}")
        e(f"v_permlane32_swap_b32 v{vL}, v{vY}")
        e(f"v_add_f32 v{vX}, v{vL}, v{vY}")
        e(f"v_add_f32_dpp v{vL}, v{vX}, v{vX} row_ror:8 row_mask:0xf bank_mask:0xf")
        if NW == 1:
            e(f"v_rcp_f32 v{vL}, v{vL}")
            for x in range(4):
                r, j0 = x >> 1, (x & 1) * 4
                for j in range(j0, j0 + 4):
                    e(f"v_add_f32_dpp v{vA+8*r+j}, v{vO+4*j+r}, v{vO+4*j+r} row_ror:8 row_mask:0xf bank_mask:0x3")
                for j in range(j0, j0 + 4):
                    e(f"v_add_f32_dpp v{vA+8*r+j}, v{vO+4*j+2+r}, v{vO+4*j+2+r} row_ror:8 row_mask:0xf bank_mask:0xc")
            for x in range(16):
                e(f"v_mul_f32 v{vA+x}, v{vA+x}, v{vL}")
            for x in range(8):
                e(f"v_cvt_pk_bf16_f32 v{vT+x}, v{vA+2*x}, v{vA+2*x+1}")
            e(f"buffer_store_dwordx4 {r4(vT)}, v{vEa}, s[{sO}:{sO+3}], 0 offen")
            e(f"buffer_store_dwordx4 {r4(vT+4)}, v{vEa}, s[{sO}:{sO+3}], 0 offen offset:16")
        else:
            assert vL == vMc + 1 and vMc % 2 == 0
            e("s_mov_b64 exec, 0xff")
            e(f"ds_write_b64 v{vEm}, v[{vMc}:{vMc+1}]")
            e("s_mov_b64 exec, -1")
            vTt = vA
            for x in range(4):
                r, j0 = x >> 1, (x & 1) * 4
                for j in range(j0, j0 + 4):
                    e(f"v_add_f32_dpp v{vTt+8*r+j}, v{vO+4*j+r}, v{vO+4*j+r} row_ror:8 row_mask:0xf bank_mask:0x3")
                for j in range(j0, j0 + 4):
                    e(f"v_add_f32_dpp v{vTt+8*r+j}, v{vO+4*j+2+r}, v{vO+4*j+2+r} row_ror:8 row_mask:0xf bank_mask:0xc")
                e(f"ds_write_b128 v{vEa}, {r4(vTt+4*x)} offset:{x*16}")
            NT = min(NW, 4) * 64
            CH = 256 // NT
            tpq = NT // 8
            lg = tpq.bit_length() - 1
            vq, va, vb = vX, vY, vZ
            e(f"v_lshrrev_b32 v{vq}, {lg}, v0")
            e(f"v_and_b32 v{va}, {tpq-1}, v0")
            e(f"v_lshlrev_b32 v{va}, {4 + (CH.bit_length()-1)}, v{va}")
            e(f"v_mul_u32_u24 v{vb}, 528, v{vq}")
            e(f"v_add_u32 v{va}, v{va}, v{vb}")
            e(f"v_lshlrev_b32 v{vb}, 3, v{vq}")
            e(f"v_add_u32 v{vb}, {mlbase}, v{vb}")
            e("s_waitcnt lgkmcnt(0)")
            e("s_barrier")
            if NW > 4:
                e(f"s_cmp_ge_u32 s{sW}, 4")
                e(f"s_cbranch_scc1 L_fin{tag}")
            vML = vS
            vD = vO
            assert 2 * NW <= 16 and 4 * NW * CH <= 64
            for w in range(NW):
                e(f"ds_read_b64 v[{vML+2*w}:{vML+2*w+1}], v{vb} offset:{w*64}")
            nrd = 0
            for w in range(NW):
                if w * wstride + 64 > 65535:
                    if w * wstride % 65536 == 0 or (w - 1) * wstride + 64 <= 65535:
                        e(f"v_add_u32 v{va}, {65536 if wstride <= 65536 else wstride}, v{va}")
                for cch in range(CH):
                    off = (w * wstride) % 65536 + cch * 16
                    e(f"ds_read_b128 {r4(vD+4*(w*CH+cch))}, v{va} offset:{off}")
                    nrd += 1
            e(f"s_waitcnt lgkmcnt({min(nrd,15)})")
            if NW == 1:
                e(f"v_rcp_f32 v{vL}, v{vML+1}")
                e("s_waitcnt lgkmcnt(0)")
                for x in range(4 * CH):
                    e(f"v_mul_f32 v{vD+x}, v{vD+x}, v{vL}")
            else:
                e(f"v_max_f32 v{vM}, v{vML}, v{vML+2}")
                for w in range(2, NW, 2):
                    e(f"v_max3_f32 v{vM}, v{vM}, v{vML+2*w}, v{vML+2*w+2}")
                for w in range(NW):
                    e(f"v_sub_f32 v{vML+2*w}, v{vML+2*w}, v{vM}")
                for w in range(NW):
                    e(f"v_exp_f32 v{vML+2*w}, v{vML+2*w}")
                e(f"v_mul_f32 v{vL}, v{vML}, v{vML+1}")
                for w in range(1, NW):
                    e(f"v_fmac_f32 v{vL}, v{vML+2*w}, v{vML+2*w+1}")
                e(f"v_rcp_f32 v{vL}, v{vL}")
                for w in range(NW):
                    e(f"v_mul_f32 v{vML+2*w}, v{vML+2*w}, v{vL}")
                e("s_waitcnt lgkmcnt(0)")
                for x in range(4 * CH):
                    e(f"v_mul_f32 v{vD+x}, v{vD+x}, v{vML}")
                for w in range(1, NW):
                    for x in range(4 * CH):
                        e(f"v_fmac_f32 v{vD+x}, v{vD+4*w*CH+x}, v{vML+2*w}")
            for x in range(2 * CH):
                e(f"v_cvt_pk_bf16_f32 v{vT+x}, v{vD+2*x}, v{vD+2*x+1}")
            e(f"v_lshlrev_b32 v{va}, {3 + (CH.bit_length()-1)}, v0")
            if CH == 1:
                e(f"buffer_store_dwordx2 v[{vT}:{vT+1}], v{va}, s[{sO}:{sO+3}], 0 offen")
            else:
                for x in range(CH // 2):
                    e(f"buffer_store_dwordx4 {r4(vT+4*x)}, v{va}, s[{sO}:{sO+3}], 0 offen" + (f" offset:{16*x}" if x else ""))
        out.append(f"L_fin{tag}:")
        if stamp:
            for s in f"""s_waitcnt vmcnt(0)
    s_memrealtime s[42:43]
    s_load_dwordx4 s[48:51], s[0:1], 32
    s_getreg_b32 s52, hwreg(HW_REG_XCC_ID)
    s_getreg_b32 s53, hwreg(HW_REG_HW_ID)
    s_waitcnt lgkmcnt(0)
    s_mov_b64 exec, 1
    s_mul_i32 s45, s2, {NW}
    s_add_u32 s45, s45, s{sW}
    s_lshl_b32 s45, s45, 5
    v_mov_b32 v1, s45
    v_mov_b32 v4, s40
    v_mov_b32 v5, s46
    v_mov_b32 v6, s42
    v_mov_b32 v7, s52
    v_mov_b32 v8, s53
    v_mov_b32 v9, 0x12345678
    global_store_dwordx4 v1, v[4:7], s[50:51]
    global_store_dwordx2 v1, v[8:9], s[50:51] offset:16""".split("\n"):
                e(s)
    import copy
    if Dodd is None:
        main_body(D, "")
    else:
        e("s_bitcmp1_b32 s39, 0")
        e("s_cbranch_scc1 L_odd")
        H0 = copy.deepcopy(H.__dict__)
        main_body(D, "e")
        out.append("    s_endpgm")
        out.append("L_odd:")
        H.__dict__.update(H0)
        main_body(Dodd, "o")
    if ctl and ctl["cw"]:
        out.append("    s_endpgm")
        out.append("L_ctl:")
        H.__init__()
        cur = out
        e("s_waitcnt lgkmcnt(0)")
        e(f"s_mov_b32 s{sW}, 0")
        for s_ in ctl["csetup"][:-6]:
            e(s_)
        e(f"s_add_u32 s{sCnt}, s{sPh}, {ctl['iters']}")
        e(f"s_lshr_b32 s{sCnt}, s{sCnt}, {ctl['ck'].bit_length() - 1}")
        e(f"v_mov_b32 v{vAl}, {mlbase + NW * 64}")
        e("s_mov_b64 exec, 1")
        if ctl["skip"]:
            for _ in range(ctl["skip"]):
                e("s_barrier")
            e(f"s_sub_u32 s{sCnt}, s{sCnt}, {ctl['skip']}")
        out.append("L_cloop:")
        e(f"v_mov_b32 v{vAt}, 1")
        e("s_barrier")
        if ctl["op"] != "none":
            e(f"{ctl['op']} v{vAt}, off, s[{sDb}:{sDb+3}], s{sWo} {ctl['aflags']}")
        e(f"s_mov_b32 s{sLv}, 0")
        e("s_waitcnt vmcnt(0)")
        e(f"v_readfirstlane_b32 s{sE}, v{vAt}")
        e(f"s_sub_u32 s{sE}, s{sE}, s{sBase}")
        e(f"s_add_u32 s{sBase}, s{sBase}, {ctl['nstep']}")
        for th in ctl["th"]:
            e(f"s_cmp_ge_i32 s{sE}, {th}")
            e(f"s_addc_u32 s{sLv}, s{sLv}, 0")
        e(f"v_mov_b32 v{vX}, s{sLv}")
        e(f"ds_write_b32 v{vAl}, v{vX}")
        e(f"s_sub_u32 s{sCnt}, s{sCnt}, 1")
        e(f"s_cmp_gt_i32 s{sCnt}, 0")
        e("s_cbranch_scc1 L_cloop")
    out.append("L_end:")
    out.append("    s_endpgm")
    acc = min(256, (nv + 3) // 4 * 4)
    out.append('.section .rodata,"a"')
    out.append(".p2align 6")
    out.append(f".amdhsa_kernel {NAME}")
    out.append(f"  .amdhsa_next_free_vgpr {nv}")
    out.append(f"  .amdhsa_next_free_sgpr 72")
    out.append(f"  .amdhsa_accum_offset {acc}")
    out.append("  .amdhsa_group_segment_fixed_size 0")
    out.append("  .amdhsa_kernarg_size 48")
    out.append("  .amdhsa_user_sgpr_count 2")
    out.append("  .amdhsa_user_sgpr_kernarg_segment_ptr 1")
    out.append("  .amdhsa_system_sgpr_workgroup_id_x 1")
    out.append(".end_amdhsa_kernel")
    assert nv <= 256
    return "\n".join(out) + "\n"

def il(s): return None if s is None else [int(x) for x in s.split(",") if x]
if __name__ == "__main__":
    ap = argparse.ArgumentParser()
    ap.add_argument("-o", default="/dev/stdout")
    ap.add_argument("--nw", type=int, default=4)
    ap.add_argument("--d", default="5")
    ap.add_argument("--dodd", default=None)
    ap.add_argument("--mode", default="online")
    ap.add_argument("--nbk", type=int, default=1)
    ap.add_argument("--nbv", type=int, default=1)
    ap.add_argument("--budget", type=int, default=10)
    ap.add_argument("--dtail", type=int, default=0)
    ap.add_argument("--ntail", type=int, default=0)
    ap.add_argument("--dhead", type=int, default=0)
    ap.add_argument("--nhead", type=int, default=0)
    ap.add_argument("--ldsmin", type=int, default=0)
    ap.add_argument("--flags", default="nt")
    ap.add_argument("--stamp", action="store_true")
    ap.add_argument("-v", action="store_true")
    ap.add_argument("--ubits", default=None)
    ap.add_argument("--wbits", default=None)
    ap.add_argument("--vord", default="0,2,1,3,4,6,5,7")
    ap.add_argument("--levels", default=None)
    ap.add_argument("--th", default="")
    ap.add_argument("--ck", type=int, default=4)
    ap.add_argument("--shards", type=int, default=1)
    ap.add_argument("--shared", action="store_true")
    ap.add_argument("--onew", action="store_true")
    ap.add_argument("--ws", action="store_true")
    ap.add_argument("--cw", action="store_true")
    ap.add_argument("--op", default="buffer_atomic_add")
    ap.add_argument("--skip", type=int, default=1)
    ap.add_argument("--stride", type=int, default=4)
    ap.add_argument("--aflags", default="sc0 sc1")
    ap.add_argument("--neutral", type=int, default=-1)
    ap.add_argument("--tab", action="store_true")
    ap.add_argument("--bias", type=int, default=0)
    ap.add_argument("--tops", default="sl")
    ap.add_argument("--align", type=int, default=0)
    ap.add_argument("--sflags", default="")
    ap.add_argument("--lflags", default="sc1")
    a = ap.parse_args()
    ctl = None
    tab = None
    if a.tab:
        lv = [il(x) for x in a.levels.split("/")]
        th = il(a.th)
        assert len(th) == len(lv) - 1
        tab = dict(levels=lv, th=th, bias=a.bias, align=a.align, sflags=a.sflags, lflags=a.lflags, neutral=96 if a.ws else 48,
                   ws=a.ws, stride=a.stride, ops=a.tops)
    elif a.levels:
        lv = [il(x) for x in a.levels.split("/")]
        n = 256 * (a.nw if a.onew else 1) // (a.ck * a.shards)
        nwords = (1 if a.onew else a.nw) * a.shards * (1 if a.shared else a.ck)
        assert nwords * a.stride <= (0x200000 if a.ws else 256)
        th = [int(round(float(x) * n)) for x in a.th.split(",") if x]
        assert len(th) == len(lv) - 1
        ctl = dict(levels=lv, th=th, ck=a.ck, shards=a.shards, shared=a.shared, perwave=not a.onew, n=n, stride=a.stride,
                   aflags=a.aflags, ws=a.ws, cw=a.cw, op=a.op, skip=a.skip, neutral=len(lv) // 2 if a.neutral < 0 else a.neutral)
    open(a.o, "w").write(gen(a.nw, il(a.d), a.mode, a.nbk, a.nbv, a.budget, a.stamp, a.dtail, a.ntail, a.dhead, a.nhead,
                             a.flags, a.ldsmin, verbose=a.v, ubits=il(a.ubits), wbits=il(a.wbits), vord=il(a.vord), Dodd=il(a.dodd), ctl=ctl, tab=tab))
```
